```python
import torch

def _softmax(x, axis=-1):
    return torch.softmax(x, dim=axis)
def _gelu(x):
    return torch.nn.functional.gelu(x, approximate="tanh")
def _silu(x):
    return torch.nn.functional.silu(x)
def _sigmoid(x):
    return torch.sigmoid(x)
def _layernorm(x, axis=-1, eps=1e-5):
    m = x.mean(dim=axis, keepdim=True)
    v = x.var(dim=axis, keepdim=True, unbiased=False)
    return (x - m) / torch.sqrt(v + eps)
def _scatter_add(tgt, idx, src, axis=0):
    return tgt.clone().index_add_(axis, idx, src)
def _segment_sum(src, seg, n):
    out = torch.zeros((n,) + src.shape[1:], dtype=src.dtype)
    return out.index_add_(0, seg, src)
def _pad(x, pw):
    flat = tuple(v for pair in reversed(pw) for v in pair)
    return torch.nn.functional.pad(x, flat)

kernel_name = 'standalone__gqa_softmax__sampling'

def setup_inputs():

    _w = (lambda a: (lambda t: t.to(torch.bfloat16) if t.is_floating_point() else t)(torch.as_tensor(a)))
    B, Hq, Hkv, Sq, Sk, D = 16, 32, 8, 16, 2048, 128
    return {
        "q": _w((lambda *s: torch.randn(*s, dtype=torch.bfloat16) * 0.8)(B, Hq, Sq, D)),
        "k": _w((lambda *s: torch.randn(*s, dtype=torch.bfloat16) * 0.8)(B, Hkv, Sk, D)),
        "v": _w((lambda *s: torch.randn(*s, dtype=torch.bfloat16) * 0.05)(B, Hkv, Sk, D)),
    }

def reference(q, k, v):
    B, Hq, Sq, D = q.shape
    Hkv = k.shape[1]
    rep = Hq // Hkv
    k = (lambda x, n, axis: torch.repeat_interleave(x, n, dim=axis))(k, rep, axis=1)
    v = (lambda x, n, axis: torch.repeat_interleave(x, n, dim=axis))(v, rep, axis=1)
    scale = D ** -0.5
    scores = torch.einsum("bhqd,bhkd->bhqk", q, k) * scale
    p = _softmax(scores, axis=-1)
    return torch.einsum("bhqk,bhkd->bhqd", p, v)
```

```python
import sys, struct, math
from asmlib import *

def f32bits(x):
    return struct.unpack("<I", struct.pack("<f", x))[0]

def gen(pol=" nt", stamps=False):
    L = []
    A = L.append
    NT = 32
    UNIT = 16384
    LDS = 163840
    C = (128 ** -0.5) * math.log2(math.e)
    vQ, vK, vV, vS, vX, vP, vO, vL, vOne, vAK, vAV = 8, 24, 88, 152, 168, 184, 192, 224, 228, 232, 236
    vM, vMC, vAl, vT0, vT1, vT2 = 244, 245, 246, 247, 248, 249
    NV = 252
    def r(b, n): return f"v[{b}:{b+n-1}]"
    sC = "s33"
    A("s_cmp_ge_u32 s2, 128")
    A("s_cbranch_scc1 L_end")
    A("s_load_dwordx4 s[4:7], s[0:1], 8")
    A("s_load_dwordx2 s[16:17], s[0:1], 0")
    A("s_load_dwordx2 s[18:19], s[0:1], 24")
    if stamps:
        A("s_load_dwordx2 s[40:41], s[0:1], 40")
        A("s_memrealtime s[44:45]")
    A("v_lshrrev_b32 v1, 6, v0")
    A("v_and_b32 v2, 63, v0")
    A("v_and_b32 v3, 15, v0")
    A("v_readfirstlane_b32 s3, v1")
    A("v_lshrrev_b32 v4, 4, v2")
    A("s_cmp_ge_u32 s3, 4")
    A("s_cbranch_scc0 L_compute")
    A("s_sub_u32 s3, s3, 4")
    A("s_lshl_b32 s20, s2, 19")
    A("s_lshl_b32 s26, s3, 12")
    A("v_lshlrev_b32 v5, 8, v4")
    A("v_xor_b32 v6, v3, v4")
    for j in range(4):
        A(f"v_xor_b32 v7, {4*j}, v6")
        A(f"v_lshl_add_u32 v{8+j}, v7, 4, v5")
    A("v_lshlrev_b32 v6, 1, v4")
    A("v_xor_b32 v6, v3, v6")
    for j in range(2):
        A(f"v_xor_b32 v7, {8*j}, v6")
        A(f"v_lshl_add_u32 v{12+j}, v7, 4, v5")
    A("s_waitcnt lgkmcnt(0)")
    A("s_add_u32 s8, s4, s20"); A("s_addc_u32 s9, s5, 0"); A("s_mov_b32 s10, 0x80000"); A("s_mov_b32 s11, 0x20000")
    A("s_add_u32 s12, s6, s20"); A("s_addc_u32 s13, s7, 0"); A("s_mov_b32 s14, 0x80000"); A("s_mov_b32 s15, 0x20000")
    def issueK(soff):
        for j in range(4):
            A(f"buffer_load_dwordx4 v{8+j}, s[8:11], {soff} offen offset:{j*1024}{pol} lds")
    def issueV(soff):
        for j in range(4):
            A(f"buffer_load_dwordx4 v{12+(j%2)}, s[12:15], {soff} offen offset:{j*1024}{pol} lds")
    seq = [("K",0),("K",1),("V",0),("K",2),("V",1),("K",3),("V",2),("K",4),("V",3),("K",5)]
    for u,(kv,t) in enumerate(seq):
        A(f"s_add_u32 m0, s26, {u*UNIT}")
        A(f"s_add_u32 s30, s26, {t*UNIT}")
        (issueK if kv=="K" else issueV)("s30")
    A(f"s_add_u32 s28, s26, {4*UNIT}")
    A(f"s_add_u32 s29, s26, {6*UNIT}")
    A("s_mov_b32 s27, s26")
    A(f"s_add_u32 s31, s26, {LDS}")
    A("s_mov_b32 s32, 0")
    A("s_waitcnt vmcnt(36)")
    A("s_barrier")
    A("L_ld_loop:")
    A("s_cmp_lt_u32 s32, 28")
    A("s_cselect_b32 s14, 0x80000, 0")
    A("s_cmp_lt_u32 s32, 26")
    A("s_cselect_b32 s10, 0x80000, 0")
    A("s_mov_b32 m0, s27")
    A("s_waitcnt vmcnt(32)")
    A("s_barrier")
    issueV("s28")
    A(f"s_add_u32 s27, s27, {UNIT}")
    A(f"s_add_u32 s28, s28, {UNIT}")
    A("s_mov_b32 m0, s27")
    A("s_waitcnt vmcnt(32)")
    A("s_barrier")
    issueK("s29")
    A(f"s_add_u32 s29, s29, {UNIT}")
    A(f"s_add_u32 s27, s27, {UNIT}")
    A("s_cmp_ge_u32 s27, s31")
    A("s_cselect_b32 s27, s26, s27")
    A("s_add_u32 s32, s32, 1")
    A(f"s_cmp_lt_u32 s32, {NT}")
    A("s_cbranch_scc1 L_ld_loop")
    A("s_waitcnt vmcnt(0)")
    A("s_endpgm")
    A("L_compute:")
    A("s_lshl_b32 s20, s2, 2")
    A("s_add_u32 s20, s20, s3")
    A("s_lshl_b32 s20, s20, 12")
    A("v_lshlrev_b32 v5, 8, v3")
    A("v_lshl_add_u32 v6, v4, 4, v5")
    A("s_waitcnt lgkmcnt(0)")
    A("s_add_u32 s8, s16, s20"); A("s_addc_u32 s9, s17, 0"); A("s_mov_b32 s10, 4096"); A("s_mov_b32 s11, 0x20000")
    A("s_add_u32 s12, s18, s20"); A("s_addc_u32 s13, s19, 0"); A("s_mov_b32 s14, 4096"); A("s_mov_b32 s15, 0x20000")
    for m in range(4):
        A(f"buffer_load_dwordx4 {r(vQ+4*m,4)}, v6, s[8:11], 0 offen offset:{64*m}")
    A("v_xor_b32 v7, v3, v4")
    for m in range(4):
        A(f"v_xor_b32 v1, {4*m}, v7")
        A(f"v_lshl_add_u32 v{vAK+m}, v1, 4, v5")
    A("v_lshrrev_b32 v1, 2, v3")
    A("v_lshl_add_u32 v5, v4, 2, v1")
    A("v_and_b32 v7, 7, v5")
    A("v_lshlrev_b32 v5, 8, v5")
    A("v_and_b32 v1, 3, v3")
    A("v_lshl_add_u32 v5, v1, 3, v5")
    A(f"v_add_u32 v5, {2*UNIT}, v5")
    for t in range(8):
        A(f"v_xor_b32 v1, {t}, v7")
        A(f"v_lshl_add_u32 v{vAV+t}, v1, 5, v5")
    A("v_lshlrev_b32 v5, 8, v3")
    A("v_lshl_add_u32 v2, v4, 3, v5")
    A(f"s_mov_b32 {sC}, 0x{f32bits(C):08x}")
    for i in range(32): A(f"v_mov_b32 v{vO+i}, 0")
    for i in range(4): A(f"v_mov_b32 v{vL+i}, 0")
    for i in range(4): A(f"v_mov_b32 v{vOne+i}, 0x3f803f80")
    for i in range(8): A(f"v_mov_b32 v{vP+i}, 0")
    for i in range(64): A(f"v_mov_b32 v{vV+i}, 0")
    A(f"v_mov_b32 v{vM}, 0xff800000")
    A(f"v_mov_b32 v{vMC}, 0xff800000")
    A(f"s_mov_b32 s34, {UNIT}")
    A(f"s_mov_b32 s35, {UNIT}")
    A(f"s_mov_b32 s36, {2*UNIT}")
    A("s_mov_b32 s37, 0")
    A(f"s_mov_b32 s48, {2*UNIT}")
    A(f"s_mov_b32 s49, {(2*UNIT-LDS) & 0xffffffff}")
    A("s_mov_b32 s32, 0")
    def kread(s, m): return f"ds_read_b128 {r(vK+(s*4+m)*4,4)}, v{vAK+m} offset:{s*4096}"
    def vread(h, t, s): return f"ds_read_b64_tr_b16 {r(vV+(h*8+t)*4+2*s,2)}, v{vAV+t} offset:{h*8192+s*4096}"
    def qk(s, m):
        c = "0" if m == 0 else r(vS+4*s,4)
        return f"v_mfma_f32_16x16x32_bf16 {r(vS+4*s,4)}, {r(vK+(s*4+m)*4,4)}, {r(vQ+4*m,4)}, {c}"
    def pv(h, t): return f"v_mfma_f32_16x16x32_bf16 {r(vO+4*t,4)}, {r(vV+(h*8+t)*4,4)}, {r(vP+4*h,4)}, {r(vO+4*t,4)}"
    def lm(h): return f"v_mfma_f32_16x16x32_bf16 {r(vL,4)}, {r(vOne,4)}, {r(vP+4*h,4)}, {r(vL,4)}"
    A("s_barrier")
    for s in range(4):
        for m in range(4): A(kread(s, m))
    A("s_waitcnt vmcnt(0) lgkmcnt(0)")
    for m in range(4):
        for s in range(4): A(qk(s, m))

    def interleave(mf, fill, per=2):
        out = []
        fi = 0
        for k, x in enumerate(mf):
            out.append(x)
            want = (len(fill) * (k + 1) + len(mf) - 1) // len(mf)
            while fi < min(want, len(fill)):
                out.append(fill[fi]); fi += 1
        out += fill[fi:]
        return out

    def softmax1():
        S = lambda i: f"v{vS+i}"
        f = []
        f.append(f"v_max3_f32 v{vT0}, {S(0)}, {S(1)}, {S(2)}")
        f.append(f"v_max3_f32 v{vT1}, {S(3)}, {S(4)}, {S(5)}")
        f.append(f"v_max3_f32 v{vT0}, v{vT0}, {S(6)}, {S(7)}")
        f.append(f"v_max3_f32 v{vT1}, v{vT1}, {S(8)}, {S(9)}")
        f.append(f"v_max3_f32 v{vT0}, v{vT0}, {S(10)}, {S(11)}")
        f.append(f"v_max3_f32 v{vT1}, v{vT1}, {S(12)}, {S(13)}")
        f.append(f"v_max3_f32 v{vT0}, v{vT0}, {S(14)}, {S(15)}")
        f.append(f"v_max3_f32 v{vT0}, v{vT0}, v{vT1}, v{vM}")
        f.append(f"v_mov_b32 v{vT1}, v{vT0}")
        f.append("s_nop 1")
        f.append(f"v_permlane32_swap_b32 v{vT0}, v{vT1}")
        f.append(f"v_max_f32 v{vT0}, v{vT0}, v{vT1}")
        f.append(f"v_mov_b32 v{vT1}, v{vT0}")
        f.append("s_nop 1")
        f.append(f"v_permlane16_swap_b32 v{vT0}, v{vT1}")
        f.append(f"v_max_f32 v{vM}, v{vT0}, v{vT1}")
        f.append(f"v_mul_f32 v{vT2}, {sC}, v{vM}")
        f.append(f"v_sub_f32 v{vAl}, v{vMC}, v{vT2}")
        f.append(f"v_mov_b32 v{vMC}, v{vT2}")
        f.append(f"v_exp_f32 v{vAl}, v{vAl}")
        for i in range(16):
            f.append(f"v_fma_f32 v{vX+i}, {S(i)}, {sC}, -v{vMC}")
        return f
    def softmax2():
        f = []
        for i in range(16):
            f.append(f"v_exp_f32 v{vX+i}, v{vX+i}")
            f.append(f"v_mul_f32 v{vO+2*i}, v{vAl}, v{vO+2*i}")
            f.append(f"v_mul_f32 v{vO+2*i+1}, v{vAl}, v{vO+2*i+1}")
            if i % 2 == 1:
                f.append(f"v_cvt_pk_bf16_f32 v{vP+i//2}, v{vX+i-1}, v{vX+i}")
        f.append(f"v_mul_f32 v{vL}, v{vAl}, v{vL}")
        return f
    pvs = [pv(0,t) for t in range(8)] + [lm(0)] + [pv(1,t) for t in range(8)] + [lm(1)]
    qks = [qk(s,m) for m in range(4) for s in range(4)]

    A("L_loop:")
    for m in range(4): A(f"v_add_u32 v{vAK+m}, s35, v{vAK+m}")
    A(f"s_add_u32 s38, s34, {2*UNIT}")
    A(f"s_cmp_ge_u32 s38, {LDS}")
    A("s_cselect_b32 s35, s49, s48")
    A("s_add_u32 s34, s34, s35")
    A("s_waitcnt lgkmcnt(0)")
    A("s_barrier")
    kr = [kread(s, m) for m in range(4) for s in range(4)]
    for x in kr[:8]: A(x)
    for x in interleave(pvs, kr[8:] + softmax1()): A(x)
    for t in range(8): A(f"v_add_u32 v{vAV+t}, s37, v{vAV+t}")
    A(f"s_add_u32 s38, s36, {2*UNIT}")
    A(f"s_cmp_ge_u32 s38, {LDS}")
    A("s_cselect_b32 s37, s49, s48")
    A("s_add_u32 s36, s36, s37")
    A("s_waitcnt lgkmcnt(0)")
    A("s_barrier")
    vr = [vread(h,t,s) for h in range(2) for t in range(8) for s in range(2)]
    for x in vr[:8]: A(x)
    for x in interleave(qks, vr[8:] + softmax2()): A(x)
    A("s_add_u32 s32, s32, 1")
    A(f"s_cmp_lt_u32 s32, {NT-1}")
    A("s_cbranch_scc1 L_loop")
    A("s_waitcnt lgkmcnt(0)")
    A("s_barrier")
    A("s_nop 7")
    for x in interleave(pvs, softmax1()): A(x)
    for t in range(8): A(f"v_add_u32 v{vAV+t}, s37, v{vAV+t}")
    A("s_nop 7")
    for x in softmax2(): A(x)
    A("s_barrier")
    for x in vr: A(x)
    A(lm(0)); A(lm(1))
    for h in range(2):
        for t in range(8):
            rem = 32 - (h*16 + t*2 + 2)
            A(f"s_waitcnt lgkmcnt({min(15, rem)})")
            A(pv(h, t))
    A("s_nop 7")
    A(f"v_rcp_f32 v{vT0}, v{vL}")
    A("s_nop 0")
    for t in range(8):
        for i in range(4):
            A(f"v_mul_f32 v{vO+4*t+i}, v{vT0}, v{vO+4*t+i}")
        A(f"v_cvt_pk_bf16_f32 v{vX+2*t}, v{vO+4*t}, v{vO+4*t+1}")
        A(f"v_cvt_pk_bf16_f32 v{vX+2*t+1}, v{vO+4*t+2}, v{vO+4*t+3}")
        A(f"buffer_store_dwordx2 {r(vX+2*t,2)}, v2, s[12:15], 0 offen offset:{32*t}")
    if stamps:
        A("s_waitcnt vmcnt(0)")
        A("s_memrealtime s[46:47]")
        A("s_cmp_lg_u32 s3, 0"); A("s_cbranch_scc1 L_end")
        A("s_waitcnt lgkmcnt(0)")
        A("v_mov_b32 v8, s44"); A("v_mov_b32 v9, s45"); A("v_mov_b32 v10, s46"); A("v_mov_b32 v11, s47")
        A("s_lshl_b32 s16, s2, 4"); A("s_add_u32 s16, s16, 0x8000000")
        A("v_mov_b32 v12, s16")
        A("s_mov_b64 exec, 1")
        A("global_store_dwordx4 v12, v[8:11], s[40:41]")
    A("L_end:")
    A("s_endpgm")
    body = "\n".join("    " + x if not x.endswith(":") else x for x in L)
    return wrap(body, 128, 512, LDS, vgpr=NV, sgpr=56)

if __name__ == "__main__":
    for name, kw in {"v1nt": dict(), "v1def": dict(pol="")}.items():
        asm = gen(**kw)
        open(f"{name}.s", "w").write(asm)
        build(asm, f"{name}.co")
        asm = gen(stamps=True, **kw)
        build(asm, f"{name}_st.co")
```

```python
import re

def regs(tok):
    tok = tok.strip()
    tok = tok.lstrip('-')
    m = re.match(r'^abs\((.*)\)$', tok)
    if m: tok = m.group(1)
    m = re.match(r'^([vas])\[(\d+):(\d+)\]$', tok)
    if m: return [(m.group(1), i) for i in range(int(m.group(2)), int(m.group(3)) + 1)]
    m = re.match(r'^([vas])(\d+)$', tok)
    if m: return [(m.group(1), int(m.group(2)))]
    if tok == 'vcc': return [('s', 106), ('s', 107)]
    if tok == 'exec': return [('s', 126), ('s', 127)]
    if tok == 'm0': return [('s', 124)]
    return []

TRANS = ('v_exp_f32', 'v_log_f32', 'v_rcp_f32', 'v_rsq_f32', 'v_sqrt_f32', 'v_sin_f32', 'v_cos_f32')

class I:
    def __init__(self, text):
        self.text = text
        t = text.split(';')[0].strip()
        parts = t.split(None, 1)
        self.op = parts[0]
        rest = parts[1] if len(parts) > 1 else ''
        ops = [x.strip() for x in rest.split(',')] if rest else []
        if ops:
            ops[-1] = ops[-1].split()[0] if ops[-1] else ops[-1]
        self.ops = ops
        op = self.op
        self.mfma = op.startswith('v_mfma')
        self.valu = op.startswith('v_') and not self.mfma
        self.trans = op in TRANS
        self.ds = op.startswith('ds_')
        self.vmem = op.startswith(('buffer_', 'global_', 'flat_'))
        self.salu = op.startswith('s_')
        self.w = []; self.r = []
        self.srcc = []
        self.states = 1
        if op == 's_nop': self.states = int(ops[0], 0) + 1
        if self.mfma:
            self.w = regs(ops[0]); self.r = regs(ops[1]) + regs(ops[2]) + regs(ops[3]); self.srcc = regs(ops[3])
            self.ab = regs(ops[1]) + regs(ops[2])
            self.passes = 8 if '32x32x16' in op else 4 if '16x16x32' in op else 2 if '4x4x4' in op else 16
        elif op.startswith('v_permlane') and 'swap' in op:
            self.w = regs(ops[0]) + regs(ops[1]); self.r = list(self.w)
        elif op.startswith('v_cmp'):
            self.w = regs(ops[0]); self.r = sum((regs(x) for x in ops[1:]), [])
        elif self.valu:
            self.w = regs(ops[0]); self.r = sum((regs(x) for x in ops[1:]), [])
            if op.startswith(('v_fmac', 'v_dot2c')): self.r += self.w
            if op.startswith('v_cndmask') and len(ops) == 3: self.r += regs('vcc')
        elif self.ds:
            if op.startswith('ds_read'):
                self.w = regs(ops[0]); self.r = regs(ops[1])
            else:
                self.r = sum((regs(x) for x in ops), [])
        elif self.vmem:
            if 'load' in op and ' lds' not in t and 'lds' not in op:
                self.w = regs(ops[0]); self.r = sum((regs(x) for x in ops[1:]), [])
            elif 'atomic' in op and 'sc0' in t:
                self.w = regs(ops[0]); self.r = sum((regs(x) for x in ops), [])
            else:
                self.r = sum((regs(x) for x in ops), [])
                if ' lds' in t or 'lds' in op: self.r += regs('m0')
        elif self.salu:
            if op.startswith(('s_cmp', 's_cbranch', 's_branch', 's_waitcnt', 's_barrier', 's_nop', 's_endpgm', 's_setprio', 's_sleep')):
                self.r = sum((regs(x) for x in ops), [])
            else:
                self.w = regs(ops[0]) if ops else []; self.r = sum((regs(x) for x in ops[1:]), [])

def check(lines, name=''):
    ins = [I(x) for x in lines if not x.rstrip().endswith(':') and x.strip() and not x.strip().startswith(('.', ';'))]
    errs = []
    D_RD = {2: 5, 4: 8, 8: 12, 16: 20}
    C_OV = {2: 4, 4: 6, 8: 10, 16: 18}
    C_WAR = {2: 1, 4: 3, 8: 7, 16: 15}
    for j, b in enumerate(ins):
        dist = 0
        for i in range(j - 1, max(-1, j - 24), -1):
            a = ins[i]
            need = 0; why = ''
            aw, br, bw = set(a.w), set(b.r), set(b.w)
            if a.mfma:
                if b.mfma:
                    if aw & set(b.ab): need, why = D_RD[a.passes], 'mfmaD->AB'
                    elif aw & set(b.srcc):
                        if a.w == b.srcc and a.passes == b.passes: need, why = (2 if a.passes == 2 else 0), 'chain'
                        else: need, why = C_OV[a.passes], 'mfmaD->C overlap'
                    elif aw & bw: need, why = D_RD[a.passes], 'mfma WAW'
                elif (b.valu or b.ds or b.vmem) and (aw & (br | bw)):
                    need, why = D_RD[a.passes], 'mfmaD->use'
                if b.valu and (set(a.srcc) & bw):
                    n2 = C_WAR[a.passes]
                    if n2 > need: need, why = n2, 'srcC WAR'
            elif a.valu:
                vw = {x for x in aw if x[0] in 'va'}
                sw = {x for x in aw if x[0] == 's'}
                if b.mfma and (vw & br): need, why = 2, 'valu->mfma'
                if b.op.startswith('v_permlane') and (vw & br): need, why = 2, 'valu->permlane'
                if b.op.startswith(('v_readlane', 'v_readfirstlane')) and (vw & br): need, why = max(need, 1), 'valu->readlane'
                if a.trans and b.valu and not b.trans and (vw & br): need, why = max(need, 1), 'trans->use'
                if 'dpp' in b.text and (vw & br): need, why = max(need, 2), 'valu->dpp'
                if sw & br:
                    if b.vmem: need, why = max(need, 5), 'valu sgpr->vmem'
                    elif b.valu: need, why = max(need, 2), 'valu sgpr->valu'
            elif a.salu:
                if ('s', 124) in aw and ('s', 124) in br and b.vmem: need, why = 1, 'm0->dma'
            elif a.vmem and ('store' in a.op) and ('x4' in a.op or 'x3' in a.op):
                data = set(regs(a.ops[0])) if a.op.startswith('buffer') else set(regs(a.ops[1]))
                if data & bw: need, why = (2 if b.valu else 1), 'store data WAR'
            if need > dist:
                errs.append(f"{name}: {why}: need {need} have {dist}: [{a.text}] -> [{b.text}]")
            dist += a.states
    return errs
```

```python
import sys, struct, math
from asmlib import *
import hazard

def f32bits(x):
    return struct.unpack("<I", struct.pack("<f", x))[0]

def cost(x):
    if x.startswith(("v_exp", "v_rcp")): return 2
    if x.startswith("s_nop"): return int(x.split()[1]) + 1
    return 1

def merge(main, extra, frac=1.0, start=0.0):
    tot = sum(cost(x) for x in main)
    out = []; acc = 0; k = 0
    n = len(extra)
    for x in main:
        while k < n and acc >= tot * (start + (frac - start) * k / n):
            out.append(extra[k]); k += 1
        out.append(x); acc += cost(x)
    out += extra[k:]
    return out

def gen(pol=" nt", stamps=False, dbg=False, A_look=3, yfrac=(0.55, 0.6), xfrac=(0.92, 0.6)):
    L = []
    A = L.append
    R = 4
    KU, VU = 16384, 8192
    VB = R * KU
    XB = VB + R * VU
    LDS = XB + 16384 + 1024
    C = (128 ** -0.5) * math.log2(math.e)
    vQ, vK, vV, vS, vX, vO, vAK, vAV = 8, 40, 104, 136, 168, 200, 232, 240
    vM, vMC, vAl, vLs, vT0, vT1, vT2, vM0 = 242, 243, 244, 245, 246, 247, 248, 249
    NV = 250
    def r(b, n): return f"v[{b}:{b+n-1}]"
    sC = "s33"
    A("s_cmp_ge_u32 s2, 256")
    A("s_cbranch_scc1 L_end")
    A("s_load_dwordx4 s[4:7], s[0:1], 8")
    A("s_load_dwordx2 s[16:17], s[0:1], 0")
    A("s_load_dwordx2 s[18:19], s[0:1], 24")
    if stamps:
        A("s_load_dwordx2 s[40:41], s[0:1], 40")
        A("s_memrealtime s[44:45]")
        A("s_memtime s[50:51]")
    if dbg:
        A("s_memtime s[60:61]")
        A("s_load_dwordx2 s[58:59], s[0:1], 32")
    A("v_lshrrev_b32 v1, 6, v0")
    A("v_and_b32 v2, 63, v0")
    A("s_lshr_b32 s21, s2, 4")
    A("v_readfirstlane_b32 s3, v1")
    A("s_lshl_b32 s21, s21, 3")
    A("s_and_b32 s22, s2, 7")
    A("s_or_b32 s21, s21, s22")
    A("s_bfe_u32 s22, s2, 0x10003")
    A("s_cmp_ge_u32 s3, 4")
    A("s_cbranch_scc0 L_compute")
    A("s_sub_u32 s3, s3, 4")
    A("s_lshl_b32 s20, s21, 19")
    A("s_lshl_b32 s26, s3, 12")
    A("v_and_b32 v3, 15, v2")
    A("v_lshrrev_b32 v4, 4, v2")
    A("v_lshlrev_b32 v5, 8, v4")
    A("v_xor_b32 v6, v3, v4")
    for j in range(4):
        A(f"v_xor_b32 v7, {4*j}, v6")
        A(f"v_lshl_add_u32 v{8+j}, v7, 4, v5")
    A("v_lshrrev_b32 v4, 3, v2")
    A("v_and_b32 v3, 7, v2")
    A("v_and_b32 v5, 2, v4")
    A("v_lshlrev_b32 v5, 1, v5")
    A("v_xor_b32 v3, v3, v5")
    A("v_lshlrev_b32 v4, 8, v4")
    A("v_lshl_add_u32 v12, v3, 4, v4")
    A("v_add_u32 v13, 1024, v12")
    A("s_lshl_b32 s23, s22, 7")
    A("s_add_u32 s23, s23, s20")
    A("s_lshl_b32 s27, s3, 11")
    A(f"s_add_u32 s27, s27, {VB}")
    A("s_mov_b32 s28, s26")
    A(f"s_sub_u32 s29, s26, {3*16384}")
    A("s_mov_b32 s32, 0")
    A("s_mov_b32 s11, 0x20000"); A("s_mov_b32 s15, 0x20000")
    A("s_waitcnt lgkmcnt(0)")
    A("s_add_u32 s8, s4, s20"); A("s_addc_u32 s9, s5, 0")
    A("s_add_u32 s12, s6, s23"); A("s_addc_u32 s13, s7, 0")
    if dbg: A("s_memtime s[62:63]")
    A("s_branch L_ld_issue")
    A("L_ld_loop:")
    A(f"s_waitcnt vmcnt({6*(A_look-1)})")
    A("s_barrier")
    A("L_ld_issue:")
    A("s_cmp_lt_u32 s32, 32")
    A("s_cselect_b32 s10, 0x80000, 0")
    A("s_and_b32 s30, s32, 3")
    A("s_lshl_b32 s30, s30, 14")
    A("s_add_u32 m0, s30, s26")
    A("s_sub_u32 s31, s32, 3")
    for j in range(4):
        A(f"buffer_load_dwordx4 v{8+j}, s[8:11], s28 offen offset:{j*1024}{pol} lds")
    A("s_cmp_lt_u32 s31, 32")
    A(f"s_cselect_b32 s14, {0x80000-128}, 0")
    A("s_and_b32 s30, s31, 3")
    A("s_lshl_b32 s30, s30, 13")
    A("s_add_u32 m0, s30, s27")
    A("s_add_u32 s28, s28, 16384")
    for j in range(2):
        A(f"buffer_load_dwordx4 v{12+j}, s[12:15], s29 offen offset:{j*1024}{pol} lds")
    A("s_add_u32 s29, s29, 16384")
    A("s_add_u32 s32, s32, 1")
    A(f"s_cmp_lt_u32 s32, {A_look}")
    A("s_cbranch_scc1 L_ld_issue")
    A(f"s_cmp_lt_u32 s32, {34+A_look}")
    A("s_cbranch_scc1 L_ld_loop")
    A("s_barrier")
    A(f"s_waitcnt vmcnt({6*(A_look-1)})")
    A("s_barrier")
    A("s_waitcnt vmcnt(0)")
    A("s_endpgm")
    A("L_compute:")
    A("s_and_b32 s23, s3, 1")
    A("s_lshr_b32 s24, s3, 1")
    A("s_lshl_b32 s20, s21, 14")
    A("s_lshl_b32 s25, s23, 13")
    A("s_add_u32 s20, s20, s25")
    A("v_and_b32 v3, 31, v2")
    A("v_lshrrev_b32 v4, 5, v2")
    A("v_lshlrev_b32 v5, 8, v3")
    A("v_lshl_add_u32 v6, v4, 4, v5")
    A("s_lshl_b32 s25, s22, 7")
    A("s_waitcnt lgkmcnt(0)")
    A("s_add_u32 s8, s16, s20"); A("s_addc_u32 s9, s17, 0"); A("s_mov_b32 s10, 8192"); A("s_mov_b32 s11, 0x20000")
    A("s_add_u32 s20, s20, s25")
    A("s_add_u32 s12, s18, s20"); A("s_addc_u32 s13, s19, 0"); A(f"s_mov_b32 s14, {8192-128}"); A("s_mov_b32 s15, 0x20000")
    for m in range(8):
        A(f"buffer_load_dwordx4 {r(vQ+4*m,4)}, v6, s[8:11], 0 offen offset:{32*m}")
    A("v_and_b32 v7, 15, v2")
    A("v_xor_b32 v7, v7, v4")
    A("s_lshl_b32 s25, s24, 14")
    A("v_add_u32 v5, s25, v5")
    for m in range(8):
        A(f"v_xor_b32 v1, {2*m}, v7")
        A(f"v_lshl_add_u32 v{vAK+m}, v1, 4, v5")
    A("v_bfe_u32 v1, v2, 2, 2")
    A("v_lshl_add_u32 v5, v4, 2, v1")
    A("v_lshlrev_b32 v5, 7, v5")
    A("v_bfe_u32 v7, v2, 4, 1")
    A("v_lshl_add_u32 v5, v7, 5, v5")
    A("v_and_b32 v7, 3, v2")
    A("v_lshl_add_u32 v5, v7, 3, v5")
    A("s_lshl_b32 s25, s24, 13")
    A(f"s_add_u32 s25, s25, {VB + 2*VU}")
    A("v_add_u32 v5, s25, v5")
    A("v_lshrrev_b32 v1, 1, v1")
    for dt in range(2):
        A(f"v_xor_b32 v7, {dt}, v1")
        A(f"v_lshl_add_u32 v{vAV+dt}, v7, 6, v5")
    A("s_lshl_b32 s25, s23, 13")
    A(f"s_add_u32 s25, s25, {XB}")
    A("v_lshl_add_u32 v7, v2, 4, s25")
    A("s_lshl_b32 s25, s23, 9")
    A(f"s_add_u32 s25, s25, {XB+16384}")
    A("v_lshl_add_u32 v1, v2, 2, s25")
    A(f"s_mov_b32 {sC}, 0x{f32bits(C):08x}")
    for i in range(32): A(f"v_mov_b32 v{vO+i}, 0")
    for i in range(16): A(f"v_mov_b32 v{vX+i}, 0")
    for i in range(32): A(f"v_mov_b32 v{vV+i}, 0")
    A(f"v_mov_b32 v{vM}, 0xff800000")
    A(f"v_mov_b32 v{vMC}, 0xff800000")
    A(f"v_mov_b32 v{vM0}, 0xff800000")
    A(f"v_mov_b32 v{vLs}, 0")
    A("s_mov_b32 s32, 0")
    def kread(s, m): return f"ds_read_b128 {r(vK+(s*8+m)*4,4)}, v{vAK+m} offset:{s*8192}"
    def vread(ks, dt, u): return f"ds_read_b64_tr_b16 {r(vV+(ks*2+dt)*4+2*u,2)}, v{vAV+dt} offset:{ks*2048+u*1024}"
    def qk(s, m):
        c = "0" if m == 0 else r(vS+16*s,16)
        return f"v_mfma_f32_32x32x16_bf16 {r(vS+16*s,16)}, {r(vK+(s*8+m)*4,4)}, {r(vQ+4*m,4)}, {c}"
    def pv(ks, dt): return f"v_mfma_f32_32x32x16_bf16 {r(vO+16*dt,16)}, {r(vV+(ks*2+dt)*4,4)}, {r(vX+4*ks,4)}, {r(vO+16*dt,16)}"
    kr = [kread(s, m) for s in range(2) for m in range(8)]
    vr = [vread(ks, dt, u) for ks in range(4) for dt in range(2) for u in range(2)]
    qks = [qk(s, m) for s in range(2) for m in range(8)]
    pvs = [pv(ks, dt) for ks in range(4) for dt in range(2)]
    akx = [f"v_xor_b32 v{vAK+m}, {2*KU}, v{vAK+m}" for m in range(8)]
    avx = [f"v_xor_b32 v{vAV+dt}, {2*VU}, v{vAV+dt}" for dt in range(2)]
    if dbg: A("s_memtime s[62:63]")
    A("s_cmp_eq_u32 s24, 0")
    A("s_cbranch_scc1 L_nostag")
    A("s_barrier")
    A("L_nostag:")
    A("s_barrier")
    if dbg: A("s_memtime s[64:65]")
    for x in kr: A(x)
    A("s_waitcnt vmcnt(0) lgkmcnt(8)")
    for x in qks[:8]: A(x)
    A("s_waitcnt lgkmcnt(0)")
    for x in qks[8:]: A(x)
    for x in akx: A(x)
    A("s_barrier")

    def softmax1(extra_m=False):
        S = lambda i: f"v{vS+i}"
        X = lambda i: f"v{vX+i}"
        f = []
        f.append(f"v_max3_f32 v{vT0}, {S(0)}, {S(1)}, v{vM}")
        f.append(f"v_max3_f32 v{vT1}, {S(2)}, {S(3)}, {S(4)}")
        k = 5
        t = 0
        while k + 1 < 32:
            f.append(f"v_max3_f32 v{vT0+t}, v{vT0+t}, {S(k)}, {S(k+1)}")
            k += 2; t ^= 1
        assert k == 31
        f.append(f"v_max3_f32 v{vT0}, v{vT0}, v{vT1}, {S(31)}")
        if extra_m:
            f.append("s_waitcnt lgkmcnt(0)")
            f.append(f"v_max_f32 v{vT0}, v{vT0}, v{vM0}")
        f.append(f"v_mov_b32 v{vT1}, v{vT0}")
        f.append("s_nop 1")
        f.append(f"v_permlane32_swap_b32 v{vT0}, v{vT1}")
        f.append(f"v_max_f32 v{vM}, v{vT0}, v{vT1}")
        f.append(f"v_mul_f32 v{vT2}, {sC}, v{vM}")
        f.append(f"v_sub_f32 v{vAl}, v{vMC}, v{vT2}")
        f.append(f"v_mov_b32 v{vMC}, v{vT2}")
        f.append(f"v_exp_f32 v{vAl}, v{vAl}")
        fma = lambda i: f"v_fma_f32 {X(i)}, {S(i)}, {sC}, -v{vMC}"
        ex = lambda i: f"v_exp_f32 {X(i)}, {X(i)}"
        ad = lambda i: f"v_add_f32 v{vLs}, v{vLs}, {X(i)}"
        f.append(fma(16))
        f.append(f"v_mul_f32 v{vLs}, v{vAl}, v{vLs}")
        for i in range(16, 32):
            if i + 1 < 32: f.append(fma(i + 1))
            f.append(ex(i))
            if i > 16: f.append(ad(i - 1))
        f.append(fma(0))
        f.append(ad(31))
        for i in range(1, 16): f.append(fma(i))
        return f
    def softmax2():
        X = lambda i: f"v{vX+i}"
        f = []
        mul = lambda i: f"v_mul_f32 v{vO+i}, v{vAl}, v{vO+i}"
        for i in range(16):
            f.append(f"v_exp_f32 {X(i)}, {X(i)}")
            f.append(mul(i))
            f.append(f"v_add_f32 v{vLs}, v{vLs}, {X(i)}")
            if i % 2 == 1:
                f.append(f"v_cvt_pk_bf16_f32 {X(i//2)}, {X(i-1)}, {X(i)}")
        for j in range(8, 16):
            f.append(f"v_cvt_pk_bf16_f32 {X(j)}, {X(2*j)}, {X(2*j+1)}")
            f.append(mul(2*j)); f.append(mul(2*j+1))
        return f
    def check_order(seq):
        for e in range(16):
            pos_f = [k for k, x in enumerate(seq) if x.startswith(f"v_fma_f32 v{vX+e},")]
            for dt in range(2):
                pos_m = seq.index(pv(e // 4, dt))
                assert pos_f[0] > pos_m, (e, pos_f, pos_m)
    loop = []
    B = loop.append
    B("s_waitcnt lgkmcnt(0)")
    B("s_barrier")
    y = merge(merge(softmax1() + avx, kr, yfrac[1]), pvs, yfrac[0])
    check_order(y)
    loop += y
    B("s_waitcnt lgkmcnt(0)")
    B("s_barrier")
    x = merge(merge(softmax2() + akx, vr, xfrac[1]), qks, xfrac[0])
    loop += x
    if dbg:
        B("s_cmp_lg_u32 s32, 0"); B("s_cbranch_scc1 L_d1"); B("s_memtime s[66:67]"); B("L_d1:")
        B("s_cmp_lg_u32 s32, 1"); B("s_cbranch_scc1 L_d2"); B("s_memtime s[68:69]"); B("L_d2:")
    B("s_add_u32 s32, s32, 1")
    B("s_cmp_lt_u32 s32, 15")
    B("s_cbranch_scc1 L_loop")
    pre = list(L)
    A("L_loop:")
    L.extend(loop)
    tail = []
    T = tail.append
    if dbg: T("s_memtime s[70:71]")
    T("s_waitcnt lgkmcnt(0)")
    T("s_barrier")
    T("s_cmp_eq_u32 s24, 0")
    T("s_cbranch_scc1 L_t1")
    T(f"ds_read_b32 v{vM0}, v1")
    T("L_t1:")
    y = merge(softmax1(True) + avx, pvs, 0.5)
    check_order(y)
    tail += y
    T("s_cmp_eq_u32 s24, 0")
    T("s_cbranch_scc0 L_t2")
    T(f"ds_write_b32 v1, v{vM}")
    T("L_t2:")
    tail += softmax2()
    T("s_cmp_eq_u32 s24, 0")
    T("s_cbranch_scc1 L_t3")
    T(f"v_mul_f32 v{vT2}, {sC}, v{vM0}")
    T(f"v_sub_f32 v{vT2}, v{vT2}, v{vMC}")
    T(f"v_exp_f32 v{vT2}, v{vT2}")
    T("s_barrier")
    T(f"ds_read_b32 v{vT0}, v1 offset:256")
    for j in range(8): T(f"ds_read_b128 {r(vK+4*j,4)}, v7 offset:{1024*j}")
    T("s_waitcnt lgkmcnt(8)")
    T(f"v_fmac_f32 v{vLs}, v{vT2}, v{vT0}")
    T(f"v_mov_b32 v{vT1}, v{vLs}")
    T("s_nop 1")
    T(f"v_permlane32_swap_b32 v{vLs}, v{vT1}")
    T(f"v_add_f32 v{vLs}, v{vLs}, v{vT1}")
    T(f"v_rcp_f32 v{vLs}, v{vLs}")
    for j in range(8):
        T(f"s_waitcnt lgkmcnt({7-j})")
        for i in range(4): T(f"v_fmac_f32 v{vO+4*j+i}, v{vT2}, v{vK+4*j+i}")
    T("L_t3:")
    T("s_waitcnt lgkmcnt(0)")
    T("s_barrier")
    for x in vr: T(x)
    for k, x in enumerate(pvs):
        T(f"s_waitcnt lgkmcnt({14-2*k})")
        T(x)
    T("s_cmp_eq_u32 s24, 0")
    T("s_cbranch_scc0 L_t4")
    T("s_nop 9")
    for j in range(8): T(f"ds_write_b128 v7, {r(vO+4*j,4)} offset:{1024*j}")
    T(f"ds_write_b32 v1, v{vLs} offset:256")
    T("s_waitcnt lgkmcnt(0)")
    T("s_barrier")
    T("s_endpgm")
    T("L_t4:")
    T("s_nop 9")
    for dt in range(2):
        for g2 in range(2):
            b = vO + 16*dt + 8*g2
            d = vS + 8*dt + 4*g2
            for i in range(8): T(f"v_mul_f32 v{b+i}, v{vLs}, v{b+i}")
            for i in range(4): T(f"v_cvt_pk_bf16_f32 v{d+i}, v{b+2*i}, v{b+2*i+1}")
            T("s_nop 1")
            T(f"v_permlane32_swap_b32 v{d}, v{d+2}")
            T(f"v_permlane32_swap_b32 v{d+1}, v{d+3}")
            T(f"buffer_store_dwordx4 {r(d,4)}, v6, s[12:15], 0 offen offset:{dt*64+g2*32}")
    L.extend(tail)
    errs = hazard.check(pre[pre.index("L_compute:"):] + loop + loop + tail, "compute") + hazard.check(pre[:pre.index("L_compute:")], "loader")
    for e in errs: print("HAZARD", e)
    if dbg:
        A("s_waitcnt vmcnt(0)")
        A("s_memtime s[74:75]")
        A("s_waitcnt lgkmcnt(0)")
        A("s_cmp_lg_u32 s2, 5"); A("s_cbranch_scc1 L_d3")
        A("s_cmp_lg_u32 s3, 2"); A("s_cbranch_scc1 L_d3")
        for x in (62,64,66,68,70,74): A(f"s_sub_u32 s{x}, s{x}, s60")
        A("v_mov_b32 v16, s62"); A("v_mov_b32 v17, s64"); A("v_mov_b32 v18, s66"); A("v_mov_b32 v19, s68")
        A("v_mov_b32 v20, s70"); A("v_mov_b32 v21, s74"); A("v_mov_b32 v22, 0"); A("v_mov_b32 v23, 0")
        A("v_mov_b32 v12, 16")
        A("s_mov_b64 exec, 1")
        A("global_store_dwordx4 v12, v[16:19], s[58:59]")
        A("global_store_dwordx4 v12, v[20:23], s[58:59] offset:16")
        A("s_mov_b64 exec, -1")
        A("L_d3:")
    if stamps:
        A("s_waitcnt vmcnt(0)")
        A("s_memrealtime s[46:47]")
        A("s_memtime s[52:53]")
        A("s_cmp_lg_u32 s3, 2"); A("s_cbranch_scc1 L_end")
        A("s_waitcnt lgkmcnt(0)")
        A("v_mov_b32 v8, s44"); A("v_mov_b32 v9, s45"); A("v_mov_b32 v10, s46"); A("v_mov_b32 v11, s47")
        A("s_lshl_b32 s16, s2, 4"); A("s_add_u32 s16, s16, 0x8000000")
        A("v_mov_b32 v12, s16")
        A("s_mov_b64 exec, 1")
        A("global_store_dwordx4 v12, v[8:11], s[40:41]")
        A("v_mov_b32 v16, s50"); A("v_mov_b32 v17, s51"); A("v_mov_b32 v18, s52"); A("v_mov_b32 v19, s53")
        A("v_add_u32 v12, 0x10000, v12")
        A("global_store_dwordx4 v12, v[16:19], s[40:41]")
    A("L_end:")
    A("s_endpgm")
    body = "\n".join("    " + x if not x.endswith(":") else x for x in L)
    return wrap(body, 256, 512, LDS, vgpr=NV, sgpr=80), LDS

if __name__ == "__main__":
    for name, kw in {"v2nt": dict(), "v2def": dict(pol="")}.items():
        asm, lds = gen(**kw)
        open(f"{name}.s", "w").write(asm)
        build(asm, f"{name}.co")
        asm, lds = gen(dbg=True, stamps=True, **kw)
        open(f"{name}_dbg.s", "w").write(asm)
        build(asm, f"{name}_dbg.co")
        print(name, lds)
```

```python
import sys, struct, math
from asmlib import *
import hazard

def f32bits(x):
    return struct.unpack("<I", struct.pack("<f", x))[0]

def cost(x):
    if x.endswith(":"): return 0
    if x.startswith(("v_exp", "v_rcp")): return 2
    if x.startswith("ds_read"): return 2
    if x.startswith("s_nop"): return int(x.split()[1]) + 1
    return 1

def merge(main, extra, frac=1.0, start=0.0):
    tot = sum(cost(x) for x in main)
    out = []; acc = 0; k = 0
    n = len(extra)
    for x in main:
        while k < n and acc >= tot * (start + (frac - start) * k / n) and not x.endswith(":"):
            out.append(extra[k]); k += 1
        out.append(x); acc += cost(x)
    out += extra[k:]
    return out

def gen(pol=" nt", stamps=False, dbg=False, A_look=3, yfrac=(0.6, 0.6), xfrac=(0.95, 0.6), nomem=False, drop=(),
        summode="add", fmamode="fma", nY=16, stpol="", THR=8.0):
    L = []
    A = L.append
    R = 4
    KU, VU = 16384, 8192
    VB = R * KU
    XB = VB + R * VU
    LDS = XB + 16384 + 1024
    C = (128 ** -0.5) * math.log2(math.e)
    vQ, vK, vV, vS, vX, vO, vAK, vAV = 8, 40, 104, 136, 168, 200, 232, 240
    vMC, vM, vLs, vAl, vT0, vT1, vT2, vM0, vMT = 242, 243, 244, 248, 249, 250, 251, 252, 253
    vOne = 254
    NV = 256
    def r(b, n): return f"v[{b}:{b+n-1}]"
    sC = "s34"
    A("s_cmp_ge_u32 s2, 256")
    A("s_cbranch_scc1 L_end")
    A("s_load_dwordx4 s[4:7], s[0:1], 8")
    A("s_load_dwordx2 s[16:17], s[0:1], 0")
    A("s_load_dwordx2 s[18:19], s[0:1], 24")
    if stamps:
        A("s_load_dwordx2 s[40:41], s[0:1], 40")
        A("s_memrealtime s[44:45]")
        A("s_memtime s[50:51]")
    if dbg:
        A("s_memtime s[60:61]")
        A("s_load_dwordx2 s[58:59], s[0:1], 32")
    A("v_lshrrev_b32 v1, 6, v0")
    A("v_and_b32 v2, 63, v0")
    A("s_lshr_b32 s21, s2, 4")
    A("v_readfirstlane_b32 s3, v1")
    A("s_lshl_b32 s21, s21, 3")
    A("s_and_b32 s22, s2, 7")
    A("s_or_b32 s21, s21, s22")
    A("s_bfe_u32 s22, s2, 0x10003")
    A("s_cmp_ge_u32 s3, 4")
    A("s_cbranch_scc0 L_compute")
    A("s_sub_u32 s3, s3, 4")
    A("s_lshl_b32 s20, s21, 19")
    A("s_lshl_b32 s26, s3, 12")
    A("v_and_b32 v3, 15, v2")
    A("v_lshrrev_b32 v4, 4, v2")
    A("v_lshlrev_b32 v5, 8, v4")
    A("v_xor_b32 v6, v3, v4")
    for j in range(4):
        A(f"v_xor_b32 v7, {4*j}, v6")
        A(f"v_lshl_add_u32 v{8+j}, v7, 4, v5")
    A("v_lshrrev_b32 v4, 3, v2")
    A("v_and_b32 v3, 7, v2")
    A("v_and_b32 v5, 2, v4")
    A("v_lshlrev_b32 v5, 1, v5")
    A("v_xor_b32 v3, v3, v5")
    A("v_lshlrev_b32 v4, 8, v4")
    A("v_lshl_add_u32 v12, v3, 4, v4")
    A("v_add_u32 v13, 1024, v12")
    A("s_lshl_b32 s23, s22, 7")
    A("s_add_u32 s23, s23, s20")
    A("s_lshl_b32 s24, s21, 14")
    A("s_lshl_b32 s27, s3, 11")
    A(f"s_add_u32 s27, s27, {VB}")
    A("s_mov_b32 s28, s26")
    A(f"s_sub_u32 s29, s26, {3*16384}")
    A("s_mov_b32 s32, 0")
    A("s_mov_b32 s11, 0x20000"); A("s_mov_b32 s15, 0x20000"); A("s_mov_b32 s39, 0x20000"); A("s_mov_b32 s38, 16384")
    A(f"s_add_u32 m0, s26, {XB}")
    A("s_waitcnt lgkmcnt(0)")
    A("s_add_u32 s36, s16, s24"); A("s_addc_u32 s37, s17, 0")
    A("s_add_u32 s8, s4, s20"); A("s_addc_u32 s9, s5, 0")
    for j in range(4):
        A(f"buffer_load_dwordx4 v{8+j}, s[36:39], s26 offen offset:{j*1024} lds")
    A("s_add_u32 s12, s6, s23"); A("s_addc_u32 s13, s7, 0")
    A("s_branch L_ld_issue")
    A("L_ld_loop:")
    A(f"s_waitcnt vmcnt({6*(A_look-1)})")
    A("s_barrier")
    A("L_ld_issue:")
    A("s_cmp_lt_u32 s32, 32")
    A("s_cselect_b32 s10, 0x80000, 0" if not nomem else "s_mov_b32 s10, 0")
    A("s_and_b32 s30, s32, 3")
    A("s_lshl_b32 s30, s30, 14")
    A("s_add_u32 m0, s30, s26")
    A("s_sub_u32 s31, s32, 3")
    for j in range(4):
        A(f"buffer_load_dwordx4 v{8+j}, s[8:11], s28 offen offset:{j*1024}{pol} lds")
    A("s_cmp_lt_u32 s31, 32")
    A(f"s_cselect_b32 s14, {0x80000-128}, 0" if not nomem else "s_mov_b32 s14, 0")
    A("s_and_b32 s30, s31, 3")
    A("s_lshl_b32 s30, s30, 13")
    A("s_add_u32 m0, s30, s27")
    A("s_add_u32 s28, s28, 16384")
    for j in range(2):
        A(f"buffer_load_dwordx4 v{12+j}, s[12:15], s29 offen offset:{j*1024}{pol} lds")
    A("s_add_u32 s29, s29, 16384")
    A("s_add_u32 s32, s32, 1")
    A(f"s_cmp_lt_u32 s32, {A_look}")
    A("s_cbranch_scc1 L_ld_issue")
    A(f"s_cmp_lt_u32 s32, {34+A_look}")
    A("s_cbranch_scc1 L_ld_loop")
    A("s_barrier")
    A(f"s_waitcnt vmcnt({6*(A_look-1)})")
    A("s_barrier")
    A("s_waitcnt vmcnt(0)")
    A("s_endpgm")
    A("L_compute:")
    A("s_and_b32 s23, s3, 1")
    A("s_lshr_b32 s24, s3, 1")
    A("s_lshl_b32 s20, s21, 14")
    A("s_lshl_b32 s25, s23, 13")
    A("s_add_u32 s20, s20, s25")
    A("v_and_b32 v3, 31, v2")
    A("v_lshrrev_b32 v4, 5, v2")
    A("v_lshlrev_b32 v5, 8, v3")
    A("v_lshl_add_u32 v6, v4, 4, v5")
    A("s_lshl_b32 s26, s22, 7")
    A("s_add_u32 s20, s20, s26")
    A("v_and_b32 v7, 15, v2")
    A("v_xor_b32 v7, v7, v4")
    A(f"s_add_u32 s25, s25, {XB}")
    A("v_add_u32 v5, s25, v5")
    for m in range(8):
        A(f"v_xor_b32 v1, {2*m}, v7")
        A(f"v_lshl_add_u32 v{vAK+m}, v1, 4, v5")
    A("s_lshl_b32 s26, s24, 14")
    A("s_sub_u32 s27, s26, s25")
    A("v_lshl_add_u32 v7, v2, 4, s25")
    A("v_bfe_u32 v1, v2, 2, 2")
    A("v_lshl_add_u32 v5, v4, 2, v1")
    A("v_lshlrev_b32 v5, 7, v5")
    A("v_bfe_u32 v3, v2, 4, 1")
    A("v_lshl_add_u32 v5, v3, 5, v5")
    A("v_and_b32 v3, 3, v2")
    A("v_lshl_add_u32 v5, v3, 3, v5")
    A("s_lshl_b32 s25, s24, 13")
    A(f"s_add_u32 s25, s25, {VB + 2*VU}")
    A("v_add_u32 v5, s25, v5")
    A("v_lshrrev_b32 v1, 1, v1")
    for dt in range(2):
        A(f"v_xor_b32 v3, {dt}, v1")
        A(f"v_lshl_add_u32 v{vAV+dt}, v3, 6, v5")
    A("s_lshl_b32 s25, s23, 9")
    A(f"s_add_u32 s25, s25, {XB+16384}")
    A("v_lshl_add_u32 v1, v2, 2, s25")
    A(f"s_mov_b32 s34, 0x{f32bits(C):08x}")
    A(f"s_mov_b32 s35, 0x{f32bits(C):08x}")
    A(f"s_mov_b32 s33, 0x{f32bits(THR/C):08x}")
    for i in range(32): A(f"v_mov_b32 v{vO+i}, 0")
    for i in range(16): A(f"v_mov_b32 v{vX+i}, 0")
    for i in range(32): A(f"v_mov_b32 v{vV+i}, 0")
    for v in (vM, vMC, vM0, vMT): A(f"v_mov_b32 v{v}, 0xff800000")
    for i in range(4): A(f"v_mov_b32 v{vLs+i}, 0")
    A(f"v_mov_b32 v{vOne}, 0x3f803f80"); A(f"v_mov_b32 v{vOne+1}, 0x3f803f80")
    A("s_mov_b32 s32, 0")
    A("s_mov_b32 s36, 0")
    A("s_waitcnt lgkmcnt(0)")
    A("s_add_u32 s12, s18, s20"); A("s_addc_u32 s13, s19, 0"); A(f"s_mov_b32 s14, {8192-128}"); A("s_mov_b32 s15, 0x20000")
    def kread(s, m): return f"ds_read_b128 {r(vK+(s*8+m)*4,4)}, v{vAK+m} offset:{s*8192}"
    def vread(ks, dt, u): return f"ds_read_b64_tr_b16 {r(vV+(ks*2+dt)*4+2*u,2)}, v{vAV+dt} offset:{ks*2048+u*1024}"
    def qk(s, m):
        c = "0" if m == 0 else r(vS+16*s,16)
        return f"v_mfma_f32_32x32x16_bf16 {r(vS+16*s,16)}, {r(vK+(s*8+m)*4,4)}, {r(vQ+4*m,4)}, {c}"
    def pv(ks, dt): return f"v_mfma_f32_32x32x16_bf16 {r(vO+16*dt,16)}, {r(vV+(ks*2+dt)*4,4)}, {r(vX+4*ks,4)}, {r(vO+16*dt,16)}"
    def lm(j): return f"v_mfma_f32_4x4x4_16b_bf16 {r(vLs,4)}, {r(vOne,2)}, {r(vX+2*j,2)}, {r(vLs,4)}"
    kr = [kread(s, m) for s in range(2) for m in range(8)]
    vr = [vread(ks, dt, u) for ks in range(4) for dt in range(2) for u in range(2)]
    qks = [qk(s, m) for s in range(2) for m in range(8)]
    pvs = [pv(ks, dt) for ks in range(4) for dt in range(2)]
    akx = [f"v_xor_b32 v{vAK+m}, {2*KU}, v{vAK+m}" for m in range(8)]
    avx = [f"v_xor_b32 v{vAV+dt}, {2*VU}, v{vAV+dt}" for dt in range(2)]
    if dbg: A("s_memtime s[62:63]")
    A("s_barrier")
    for m in range(8): A(f"ds_read_b128 {r(vQ+4*m,4)}, v{vAK+m}")
    for m in range(8): A(f"v_add_u32 v{vAK+m}, s27, v{vAK+m}")
    A("s_cmp_eq_u32 s24, 0")
    A("s_cbranch_scc1 L_nostag")
    A("s_barrier")
    A("L_nostag:")
    if dbg: A("s_memtime s[64:65]")
    for x in kr: A(x)
    for x in akx: A(x)
    A("s_waitcnt lgkmcnt(0)")
    A("s_barrier")
    for x in qks: A(x)
    A("s_nop 3")

    S = lambda i: f"v{vS+i}"
    X = lambda i: f"v{vX+i}"
    def fmas(lo, hi):
        if fmamode == "fma":
            return [f"v_fma_f32 {X(i)}, {S(i)}, {sC}, -v{vMC}" for i in range(lo, hi)]
        return [f"v_pk_fma_f32 {r(vX+i,2)}, {r(vS+i,2)}, s[34:35], {r(vMC,2)} op_sel_hi:[1,1,0] neg_lo:[0,0,1] neg_hi:[0,0,1]" for i in range(lo, hi, 2)]
    def exps(lo, hi, cvt):
        f = []
        pend = []
        for i in range(lo, hi):
            f.append(f"v_exp_f32 {X(i)}, {X(i)}")
            f += pend; pend = []
            if summode == "add": pend.append(f"v_add_f32 v{vLs}, v{vLs}, {X(i)}")
            if i % 2 == 1:
                if summode == "pkadd": pend.append(f"v_pk_add_f32 {r(vLs,2)}, {r(vLs,2)}, {r(vX+i-1,2)}")
                if cvt: pend.append(f"v_cvt_pk_bf16_f32 {X(i//2)}, {X(i-1)}, {X(i)}")
        return f, pend
    rare = []
    def softmax1(tag, extra_m=False):
        f = []
        f.append(f"v_max3_f32 v{vT0}, {S(0)}, {S(1)}, {S(2)}")
        f.append(f"v_max3_f32 v{vT1}, {S(3)}, {S(4)}, {S(5)}")
        k = 6; t = 0
        while k + 1 < 32:
            f.append(f"v_max3_f32 v{vT0+t}, v{vT0+t}, {S(k)}, {S(k+1)}")
            k += 2; t ^= 1
        assert k == 32
        if extra_m:
            f.append("s_waitcnt lgkmcnt(0)")
            f.append(f"v_max3_f32 v{vT0}, v{vT0}, v{vT1}, v{vM0}")
        else:
            f.append(f"v_max_f32 v{vT0}, v{vT0}, v{vT1}")
        f.append(f"v_cmp_gt_f32 vcc, v{vT0}, v{vMT}")
        f.append(f"s_cbranch_vccnz L_rare{tag}")
        f.append(f"L_back{tag}:")
        rare.extend([f"L_rare{tag}:",
            f"v_max_f32 v{vT0}, v{vT0}, v{vM}",
            f"v_mov_b32 v{vT1}, v{vT0}",
            "s_nop 1",
            f"v_permlane32_swap_b32 v{vT0}, v{vT1}",
            f"v_max_f32 v{vM}, v{vT0}, v{vT1}",
            f"v_mul_f32 v{vT2}, {sC}, v{vM}",
            f"v_sub_f32 v{vAl}, v{vMC}, v{vT2}",
            f"v_mov_b32 v{vMC}, v{vT2}",
            f"v_exp_f32 v{vAl}, v{vAl}",
            f"v_add_f32 v{vMT}, s33, v{vM}",
            "s_mov_b32 s36, 1"]
            + ([f"v_mul_f32 v{vLs}, v{vAl}, v{vLs}", f"v_mul_f32 v{vLs+1}, v{vAl}, v{vLs+1}"] if summode != "mfma4" else [])
            + [f"s_branch L_back{tag}"])
        hi = fmas(16, 32)
        e, pend = exps(32 - nY, 32, False)
        f += hi[:2]
        f += merge(e, hi[2:], 0.5) if nY == 16 else hi[2:] + e
        lo = fmas(0, 16)
        f.append(lo[0]); f += pend; f += lo[1:]
        return f
    def softmax2(tag):
        f = ["s_cmp_lg_u32 s36, 0", f"s_cbranch_scc1 L_resc{tag}", f"L_rback{tag}:"]
        rare.extend([f"L_resc{tag}:", "s_nop 7"] + [f"v_mul_f32 v{vO+i}, v{vAl}, v{vO+i}" for i in range(32)]
                    + ([f"v_mul_f32 v{vLs}, v{vAl}, v{vLs}"] if summode == "mfma4" else [])
                    + ["s_mov_b32 s36, 0", f"s_branch L_rback{tag}"])
        e, pend = exps(0, 32 - nY, True)
        f += e
        rest = [f"v_cvt_pk_bf16_f32 {X(j)}, {X(2*j)}, {X(2*j+1)}" for j in range((32 - nY) // 2, 16)]
        f.append("s_nop 0")
        f += pend + rest
        return f
    def check_order(seq):
        for e in range(16):
            pos_f = [k for k, x in enumerate(seq) if x.startswith((f"v_fma_f32 v{vX+e},", f"v_pk_fma_f32 v[{vX+(e&~1)}:"))]
            users = [pv(e // 4, 0), pv(e // 4, 1)] + ([lm(e // 2)] if summode == "mfma4" else [])
            for u in users:
                assert pos_f[0] > seq.index(u), (e, pos_f, u)
    if summode == "mfma4":
        pvl = []
        for ks in range(4): pvl += [pv(ks, 0), lm(2*ks), pv(ks, 1), lm(2*ks+1)]
    else:
        pvl = pvs
    loop = []
    B = loop.append
    B("s_waitcnt lgkmcnt(0)")
    B("s_barrier")
    y = merge(merge(softmax1("A") + avx, kr, yfrac[1]), pvl, yfrac[0])
    check_order(y)
    loop += y
    B("s_waitcnt lgkmcnt(0)")
    B("s_barrier")
    x = merge(merge(softmax2("A") + akx, vr, xfrac[1]), qks, xfrac[0])
    loop += x
    if dbg:
        B("s_cmp_lg_u32 s32, 0"); B("s_cbranch_scc1 L_d1"); B("s_memtime s[66:67]"); B("L_d1:")
        B("s_cmp_lg_u32 s32, 1"); B("s_cbranch_scc1 L_d2"); B("s_memtime s[68:69]"); B("L_d2:")
    B("s_add_u32 s32, s32, 1")
    B("s_cmp_lt_u32 s32, 15")
    B("s_cbranch_scc1 L_loop")
    if drop:
        loop = [z for z in loop if not z.startswith(tuple(drop))]
    pre = list(L)
    A("L_loop:")
    L.extend(loop)
    tail = []
    T = tail.append
    if dbg: T("s_memtime s[70:71]")
    T("s_waitcnt lgkmcnt(0)")
    T("s_barrier")
    T("s_cmp_eq_u32 s24, 0")
    T("s_cbranch_scc1 L_t1")
    T(f"ds_read_b32 v{vM0}, v1")
    T("L_t1:")
    T("s_nop 3")
    y = merge(softmax1("B", True) + avx, pvl, 0.5)
    check_order(y)
    tail += y
    T("s_cmp_eq_u32 s24, 0")
    T("s_cbranch_scc0 L_t2")
    T(f"ds_write_b32 v1, v{vM}")
    T("L_t2:")
    tail += softmax2("B")
    if summode == "mfma4":
        T("s_nop 1")
        for j in range(8):
            T(lm(j)); T("s_nop 1")
        T("s_nop 3")
    if summode == "pkadd":
        T(f"v_add_f32 v{vLs}, v{vLs}, v{vLs+1}")
    T("s_cmp_eq_u32 s24, 0")
    T("s_cbranch_scc1 L_t3")
    T(f"v_mul_f32 v{vT2}, {sC}, v{vM0}")
    T(f"v_sub_f32 v{vT2}, v{vT2}, v{vMC}")
    T(f"v_exp_f32 v{vT2}, v{vT2}")
    T("s_barrier")
    T(f"ds_read_b32 v{vT0}, v1 offset:256")
    for j in range(8): T(f"ds_read_b128 {r(vK+4*j,4)}, v7 offset:{1024*j}")
    T("s_waitcnt lgkmcnt(8)")
    T(f"v_fmac_f32 v{vLs}, v{vT2}, v{vT0}")
    T(f"v_mov_b32 v{vT1}, v{vLs}")
    T("s_nop 1")
    T(f"v_permlane32_swap_b32 v{vLs}, v{vT1}")
    T(f"v_add_f32 v{vLs}, v{vLs}, v{vT1}")
    T(f"v_rcp_f32 v{vLs}, v{vLs}")
    for j in range(8):
        T(f"s_waitcnt lgkmcnt({7-j})")
        for i in range(4): T(f"v_fmac_f32 v{vO+4*j+i}, v{vT2}, v{vK+4*j+i}")
    T("L_t3:")
    T("s_waitcnt lgkmcnt(0)")
    T("s_barrier")
    for x in vr: T(x)
    for k, x in enumerate(pvs):
        T(f"s_waitcnt lgkmcnt({14-2*k})")
        T(x)
    T("s_cmp_eq_u32 s24, 0")
    T("s_cbranch_scc0 L_t4")
    T("s_nop 9")
    for j in range(8): T(f"ds_write_b128 v7, {r(vO+4*j,4)} offset:{1024*j}")
    T(f"ds_write_b32 v1, v{vLs} offset:256")
    T("s_waitcnt lgkmcnt(0)")
    T("s_barrier")
    T("s_endpgm")
    T("L_t4:")
    T("s_nop 9")
    for dt in range(2):
        for g2 in range(2):
            b = vO + 16*dt + 8*g2
            d = vS + 8*dt + 4*g2
            for i in range(8): T(f"v_mul_f32 v{b+i}, v{vLs}, v{b+i}")
            for i in range(4): T(f"v_cvt_pk_bf16_f32 v{d+i}, v{b+2*i}, v{b+2*i+1}")
            T("s_nop 1")
            T(f"v_permlane32_swap_b32 v{d}, v{d+2}")
            T(f"v_permlane32_swap_b32 v{d+1}, v{d+3}")
            T(f"buffer_store_dwordx4 {r(d,4)}, v6, s[12:15], 0 offen offset:{dt*64+g2*32}{stpol}")
    L.extend(tail)
    errs = hazard.check(pre[pre.index("L_compute:"):] + loop + loop + tail, "compute") + hazard.check(pre[:pre.index("L_compute:")], "loader") + hazard.check(rare, "rare")
    if not drop:
        for e in errs: print("HAZARD", e)
    if dbg:
        A("s_waitcnt vmcnt(0)")
        A("s_memtime s[74:75]")
        A("s_waitcnt lgkmcnt(0)")
        A("s_cmp_lg_u32 s2, 5"); A("s_cbranch_scc1 L_d3")
        A("s_cmp_lg_u32 s3, 2"); A("s_cbranch_scc1 L_d3")
        for x in (62,64,66,68,70,74): A(f"s_sub_u32 s{x}, s{x}, s60")
        A("v_mov_b32 v16, s62"); A("v_mov_b32 v17, s64"); A("v_mov_b32 v18, s66"); A("v_mov_b32 v19, s68")
        A("v_mov_b32 v20, s70"); A("v_mov_b32 v21, s74"); A("v_mov_b32 v22, 0"); A("v_mov_b32 v23, 0")
        A("v_mov_b32 v12, 16")
        A("s_mov_b64 exec, 1")
        A("global_store_dwordx4 v12, v[16:19], s[58:59]")
        A("global_store_dwordx4 v12, v[20:23], s[58:59] offset:16")
        A("s_mov_b64 exec, -1")
        A("L_d3:")
    if stamps:
        A("s_waitcnt vmcnt(0)")
        A("s_memrealtime s[46:47]")
        A("s_memtime s[52:53]")
        A("s_cmp_lg_u32 s3, 2"); A("s_cbranch_scc1 L_end")
        A("s_waitcnt lgkmcnt(0)")
        A("v_mov_b32 v8, s44"); A("v_mov_b32 v9, s45"); A("v_mov_b32 v10, s46"); A("v_mov_b32 v11, s47")
        A("s_lshl_b32 s16, s2, 4"); A("s_add_u32 s16, s16, 0x8000000")
        A("v_mov_b32 v12, s16")
        A("s_mov_b64 exec, 1")
        A("global_store_dwordx4 v12, v[8:11], s[40:41]")
        A("v_mov_b32 v16, s50"); A("v_mov_b32 v17, s51"); A("v_mov_b32 v18, s52"); A("v_mov_b32 v19, s53")
        A("v_add_u32 v12, 0x10000, v12")
        A("global_store_dwordx4 v12, v[16:19], s[40:41]")
    A("L_end:")
    A("s_endpgm")
    L.extend(rare)
    body = "\n".join("    " + x if not x.endswith(":") else x for x in L)
    return wrap(body, 256, 512, LDS, vgpr=NV, sgpr=80), LDS

if __name__ == "__main__" and len(sys.argv) > 1 and sys.argv[1] == "exp":
    vs = {
        "c_base": dict(),
        "c_pkadd": dict(summode="pkadd"),
        "c_mfma4": dict(summode="mfma4"),
        "c_pkfma": dict(fmamode="pk"),
        "c_pkpk": dict(fmamode="pk", summode="pkadd"),
        "c_pkm4": dict(fmamode="pk", summode="mfma4"),
        "c_ny8": dict(nY=8),
        "c_m4ny8": dict(nY=8, summode="mfma4"),
    }
    for name, kw in vs.items():
        asm, lds = gen(dbg=True, stamps=True, nomem=True, **kw)
        build(asm, f"{name}.co")
    print(" ".join(f"work/{n}.co:$K,256,512,{lds}" for n in vs))
    print(",".join(f'"work/{n}.co"' for n in vs))
elif __name__ == "__main__":
    for name, kw in {"v3nt": dict(), "v3def": dict(pol=""), "v3m4": dict(summode="mfma4"), "v3pk": dict(fmamode="pk", summode="pkadd")}.items():
        asm, lds = gen(**kw)
        open(f"{name}.s", "w").write(asm)
        build(asm, f"{name}.co")
        asm, lds = gen(dbg=True, stamps=True, **kw)
        build(asm, f"{name}_dbg.co")
        print(name, lds)
```

```python
import sys, struct, math
from asmlib import *
import hazard

def f32bits(x):
    return struct.unpack("<I", struct.pack("<f", x))[0]

def cost(x):
    if x.endswith(":"): return 0
    if x.startswith(("v_exp", "v_rcp")): return 2
    if x.startswith("s_nop"): return int(x.split()[1]) + 1
    return 1

def merge(main, extra, frac=1.0, start=0.0):
    tot = sum(cost(x) for x in main)
    out = []; acc = 0; k = 0
    n = len(extra)
    for x in main:
        while k < n and acc >= tot * (start + (frac - start) * k / n) and not x.endswith(":"):
            out.append(extra[k]); k += 1
        out.append(x); acc += cost(x)
    out += extra[k:]
    return out

def fix_lgkm(seq):
    out = []; issued = []
    for x in seq:
        if x.startswith("WAIT "):
            tag = x.split()[1]
            idx = max(i for i, t in enumerate(issued) if t == tag)
            n = len(issued) - 1 - idx
            out.append(f"s_waitcnt lgkmcnt({min(n, 15)})")
        else:
            if x.startswith("ds_"):
                issued.append(x.split(";@")[1].strip() if ";@" in x else "")
            out.append(x.split(";@")[0].rstrip())
    return out

def gen(pol=" nt", stamps=False, tl=False, nomem=False, NK=12, THR=8.0, act=(1, 3, 5), xpol=" sc1", stpol="", drop=(), phase=False, dbg=False):
    L = []
    A = L.append
    ND = 32 - 2 * NK
    NT = NK + ND
    U = 16384
    VB = 3 * U
    QB = 6 * U
    PX = 7 * U
    PXS = 16384 if False else 12288
    LDS = PX + 2 * 12288
    C = (128 ** -0.5) * math.log2(math.e)
    vQ, vK, vV, vS, vX, vPo, vPp, vO, vAK, vAV = 8, 40, 72, 104, 120, 136, 144, 152, 184, 192
    vMC, vLs, vRp, vRl, vMO, vLn, vMT, vT0, vT1, vT2, vT3, vAW, vAR, vRR = 194, 195, 196, 197, 198, 199, 200, 201, 202, 203, 204, 205, 206, 208
    NV = 210
    def r(b, n): return f"v[{b}:{b+n-1}]"
    sC = "s34"
    A("s_cmp_ge_u32 s2, 256")
    A("s_cbranch_scc1 L_end")
    A("s_load_dwordx4 s[4:7], s[0:1], 8")
    A("s_load_dwordx2 s[16:17], s[0:1], 0")
    A("s_load_dwordx2 s[18:19], s[0:1], 24")
    A("s_load_dwordx4 s[40:43], s[0:1], 32")
    if stamps:
        A("s_memrealtime s[44:45]")
        A("s_memtime s[50:51]")
    A("v_lshrrev_b32 v1, 6, v0")
    A("v_and_b32 v2, 63, v0")
    A("s_lshr_b32 s21, s2, 4")
    A("v_readfirstlane_b32 s3, v1")
    A("s_lshl_b32 s21, s21, 3")
    A("s_and_b32 s22, s2, 7")
    A("s_or_b32 s21, s21, s22")
    A("s_bfe_u32 s22, s2, 0x10003")
    A("s_cmp_ge_u32 s3, 4")
    A("s_cbranch_scc1 L_compute")
    if tl: A("v_mov_b32 v20, 0")
    A("s_lshl_b32 s20, s21, 19")
    A("s_lshl_b32 s26, s3, 12")
    A("v_and_b32 v3, 15, v2")
    A("v_lshrrev_b32 v4, 4, v2")
    A("v_lshlrev_b32 v5, 8, v4")
    A("v_xor_b32 v6, v3, v4")
    for j in range(4):
        A(f"v_xor_b32 v7, {4*j}, v6")
        A(f"v_lshl_add_u32 v{8+j}, v7, 4, v5")
    A("s_lshl_b32 s24, s21, 14")
    A("s_mov_b32 s11, 0x20000"); A("s_mov_b32 s15, 0x20000"); A("s_mov_b32 s39, 0x20000"); A("s_mov_b32 s38, 16384")
    A(f"s_add_u32 m0, s26, {QB}")
    A("s_waitcnt lgkmcnt(0)")
    A("s_add_u32 s36, s16, s24"); A("s_addc_u32 s37, s17, 0")
    A("s_add_u32 s8, s4, s20"); A("s_addc_u32 s9, s5, 0")
    for j in range(4):
        A(f"buffer_load_dwordx4 v{8+j}, s[36:39], s26 offen offset:{j*1024} lds")
    A("s_add_u32 s12, s6, s20"); A("s_addc_u32 s13, s7, 0")
    A("v_lshrrev_b32 v4, 3, v2")
    A("v_and_b32 v3, 7, v2")
    A("v_and_b32 v5, 2, v4")
    A("v_lshlrev_b32 v5, 1, v5")
    A("v_xor_b32 v3, v3, v5")
    A("v_lshlrev_b32 v4, 8, v4")
    A("v_lshl_add_u32 v12, v3, 4, v4")
    A("s_lshl_b32 s23, s22, 7")
    A("v_add_u32 v12, s23, v12")
    A("v_add_u32 v13, 1024, v12")
    A("v_xor_b32 v14, 128, v12")
    A("v_add_u32 v15, 1024, v14")
    A("s_lshl_b32 s27, s3, 11")
    A(f"s_add_u32 s27, s27, {VB}")
    A("s_mov_b32 s32, 0")
    A("s_mov_b32 s28, 0")
    A(f"s_mov_b32 s29, {U}")
    A("s_branch L_ld_issue")
    A("L_ld_loop:")
    A("s_waitcnt vmcnt(8)")
    A("s_barrier")
    A("L_ld_issue:")
    if tl: A("s_memrealtime s[46:47]")
    A("s_lshl_b32 s30, s32, 1"); A("s_add_u32 s30, s30, s22"); A(f"s_add_u32 s31, s32, {NK}")
    A(f"s_cmp_lt_u32 s32, {NK}"); A("s_cselect_b32 s30, s30, s31")
    A("s_lshl_b32 s30, s30, 14"); A("s_add_u32 s30, s30, s26")
    A(f"s_cmp_lt_u32 s32, {NT}")
    A("s_cselect_b32 s10, 0x80000, 0" if not nomem else "s_mov_b32 s10, 0")
    A("s_add_u32 m0, s28, s26")
    A("s_sub_u32 s33, s32, 2")
    for j in range(4):
        A(f"buffer_load_dwordx4 v{8+j}, s[8:11], s30 offen offset:{j*1024}{pol} lds")
    A("s_lshl_b32 s30, s33, 1"); A("s_add_u32 s30, s30, s22"); A(f"s_add_u32 s31, s33, {NK}")
    A(f"s_cmp_lt_u32 s33, {NK}"); A("s_cselect_b32 s30, s30, s31")
    A("s_cselect_b32 s35, 0x80000, 0" if not nomem else "s_mov_b32 s35, 0")
    A("s_lshl_b32 s30, s30, 14"); A("s_add_u32 s30, s30, s26")
    A(f"s_cmp_lt_u32 s33, {NT}")
    A("s_cselect_b32 s14, 0x80000, 0" if not nomem else "s_mov_b32 s14, 0")
    A("s_add_u32 m0, s29, s27")
    A(f"s_add_u32 s28, s28, {U}")
    for j in range(2):
        A(f"buffer_load_dwordx4 v{12+j}, s[12:15], s30 offen offset:{j*1024}{pol} lds")
    A("s_add_u32 m0, m0, 8192")
    A("s_mov_b32 s14, s35")
    for j in range(2):
        A(f"buffer_load_dwordx4 v{14+j}, s[12:15], s30 offen offset:{j*1024}{pol} lds")
    A(f"s_cmp_ge_u32 s28, {3*U}"); A("s_cselect_b32 s28, 0, s28")
    A(f"s_add_u32 s29, s29, {U}")
    A(f"s_cmp_ge_u32 s29, {3*U}"); A("s_cselect_b32 s29, 0, s29")
    if tl:
        A("s_waitcnt lgkmcnt(0)"); A("v_mov_b32 v21, s46"); A("v_cmp_eq_u32 vcc, s32, v2"); A("s_nop 1"); A("v_cndmask_b32 v20, v20, v21, vcc")
    A("s_add_u32 s32, s32, 1")
    A("s_cmp_lt_u32 s32, 2")
    A("s_cbranch_scc1 L_ld_issue")
    A(f"s_cmp_lt_u32 s32, {NT+4}")
    A("s_cbranch_scc1 L_ld_loop")
    if tl:
        A("s_cmp_lg_u32 s3, 0"); A("s_cbranch_scc1 L_end")
        A("s_lshl_b32 s16, s2, 8"); A("s_add_u32 s16, s16, 0x8040000")
        A("v_lshl_add_u32 v21, v2, 2, s16")
        A("global_store_dword v21, v20, s[42:43]")
    A("s_waitcnt vmcnt(0)")
    A("s_endpgm")
    A("L_compute:")
    A("s_sub_u32 s3, s3, 4")
    A("s_and_b32 s23, s3, 1")
    A("s_lshr_b32 s24, s3, 1")
    A("s_lshl_b32 s20, s21, 14")
    A("s_lshl_b32 s25, s23, 13")
    A("s_add_u32 s20, s20, s25")
    A("v_and_b32 v3, 31, v2")
    A("v_lshrrev_b32 v4, 5, v2")
    A("v_lshlrev_b32 v5, 8, v3")
    A("v_lshl_add_u32 v6, v4, 4, v5")
    A("s_lshl_b32 s26, s22, 7")
    A("s_add_u32 s20, s20, s26")
    A("s_lshl_b32 s26, s24, 6")
    A("s_add_u32 s20, s20, s26")
    A("v_and_b32 v7, 15, v2")
    A("v_xor_b32 v7, v7, v4")
    A(f"s_add_u32 s25, s25, {QB}")
    A("v_add_u32 v5, s25, v5")
    for m in range(8):
        A(f"v_xor_b32 v1, {2*m}, v7")
        A(f"v_lshl_add_u32 v{vAK+m}, v1, 4, v5")
    A("s_lshl_b32 s26, s24, 13")
    A("s_sub_u32 s27, s26, s25")
    A("v_bfe_u32 v1, v2, 2, 2")
    A("v_lshl_add_u32 v5, v4, 2, v1")
    A("v_lshlrev_b32 v5, 7, v5")
    A("v_bfe_u32 v3, v2, 4, 1")
    A("v_lshl_add_u32 v5, v3, 5, v5")
    A("v_and_b32 v3, 3, v2")
    A("v_lshl_add_u32 v5, v3, 3, v5")
    A("v_lshrrev_b32 v1, 1, v1")
    A("v_xor_b32 v1, s24, v1")
    A("v_lshl_add_u32 v5, v1, 6, v5")
    A("s_lshl_b32 s25, s24, 12")
    A(f"s_add_u32 s25, s25, {VB + 2*U}")
    A(f"v_add_u32 v{vAV}, s25, v5")
    A(f"v_xor_b32 v{vAV+1}, 4096, v{vAV}")
    A(f"s_mul_i32 s25, s3, 3072")
    A(f"s_add_u32 s25, s25, {PX + PXS}")
    A(f"v_lshl_add_u32 v{vAW}, v2, 4, s25")
    A("s_xor_b32 s26, s3, 2")
    A(f"s_mul_i32 s25, s26, 3072")
    A(f"s_add_u32 s25, s25, {PX + PXS}")
    A(f"v_lshl_add_u32 v{vAR}, v2, 4, s25")
    A("v_lshlrev_b32 v7, 4, v2")
    A("v_lshlrev_b32 v1, 3, v2")
    A(f"s_mov_b32 s34, 0x{f32bits(C):08x}")
    A(f"s_mov_b32 s35, 0x{f32bits(1.0/C):08x}")
    A(f"s_mov_b32 s33, 0x{f32bits(THR):08x}")
    for i in range(32): A(f"v_mov_b32 v{vO+i}, 0")
    for i in range(8): A(f"v_mov_b32 v{vPo+i}, 0")
    for v in (vMC, vMO, vMT): A(f"v_mov_b32 v{v}, 0xff800000")
    A(f"v_mov_b32 v{vLs}, 0")
    A("s_mov_b32 s32, 0")
    A(f"s_mov_b32 s28, {U}")
    A(f"s_mov_b32 s29, {2*U}")
    A(f"s_mov_b32 s30, {(-PXS) & 0xffffffff}")
    A(f"s_mov_b32 s48, {U}")
    A(f"s_mov_b32 s49, {(-2*U) & 0xffffffff}")
    pw = [f"ds_write_b128 v{vAW}, {r(vPo,4)}", f"ds_write_b128 v{vAW}, {r(vPo+4,4)} offset:1024", f"ds_write_b64 v{vAW}, {r(vMC,2)} offset:2048"]
    for x in pw: A(x)
    A("s_waitcnt lgkmcnt(0)")
    A("s_add_u32 s12, s18, s20"); A("s_addc_u32 s13, s19, 0"); A(f"s_mov_b32 s14, {8192-192}"); A("s_mov_b32 s15, 0x20000")
    A("s_lshl_b32 s25, s2, 2"); A("s_add_u32 s25, s25, s3"); A("s_lshl_b32 s25, s25, 13")
    A("s_add_u32 s8, s42, s25"); A("s_addc_u32 s9, s43, 0"); A("s_mov_b32 s10, 8192"); A("s_mov_b32 s11, 0x20000")
    A("s_xor_b32 s25, s25, 0x40000")
    A("s_add_u32 s36, s42, s25"); A("s_addc_u32 s37, s43, 0"); A("s_mov_b32 s38, 8192"); A("s_mov_b32 s39, 0x20000")
    A(f"v_add_u32 v{vAW}, s30, v{vAW}")
    def kread(m): return f"ds_read_b128 {r(vK+4*m,4)}, v{vAK+m} ;@k{m}"
    def vread(w, k2, dt, u): return f"ds_read_b64_tr_b16 {r(vV+((w*2+k2)*2+dt)*4+2*u,2)}, v{vAV+w} offset:{dt*8192+k2*2048+u*1024} ;@v{w}{k2}{dt}{u}"
    def qk(m):
        c = "0" if m == 0 else r(vS,16)
        return f"v_mfma_f32_32x32x16_bf16 {r(vS,16)}, {r(vK+4*m,4)}, {r(vQ+4*m,4)}, {c}"
    def pv(w, k2, dt):
        p = (vPo if w == 0 else vPp) + 4*k2
        return f"v_mfma_f32_32x32x16_bf16 {r(vO+16*dt,16)}, {r(vV+((w*2+k2)*2+dt)*4,4)}, {r(p,4)}, {r(vO+16*dt,16)}"
    A("s_barrier")
    for m in range(8): A(f"ds_read_b128 {r(vQ+4*m,4)}, v{vAK+m}")
    for m in range(8): A(f"v_add_u32 v{vAK+m}, s27, v{vAK+m}")
    for m in range(8): A(kread(m).split(";@")[0])
    for m in range(8): A(f"v_add_u32 v{vAK+m}, s48, v{vAK+m}")
    for m in range(8):
        A(f"s_waitcnt lgkmcnt({7-m})"); A(qk(m))
    A("s_nop 3")
    S = lambda i: f"v{vS+i}"
    X = lambda i: f"v{vX+i}"
    rare = []
    def rareB(tag, nO):
        f = [f"L_rb{tag}:", "s_waitcnt lgkmcnt(0)", "s_nop 7",
             f"v_sub_f32 v{vT1}, v{vMO}, v{vT3}", f"v_sub_f32 v{vT2}, v{vMC}, v{vT3}", f"v_sub_f32 v{vRp}, v{vRp}, v{vT3}",
             f"v_exp_f32 v{vT1}, v{vT1}", f"v_exp_f32 v{vT2}, v{vT2}", f"v_exp_f32 v{vRp}, v{vRp}",
             f"v_mov_b32 v{vMC}, v{vT3}", f"v_mov_b32 v{vMO}, v{vT3}",
             f"v_add_f32 v{vMT}, s33, v{vT3}", f"v_mul_f32 v{vMT}, s35, v{vMT}",
             f"v_mul_f32 v{vLs}, v{vT2}, v{vLs}", f"v_mul_f32 v{vRl}, v{vRp}, v{vRl}"]
        f += [f"v_mul_f32 v{vO+i}, v{vT1}, v{vO+i}" for i in range(nO)]
        for base, fac in ((vPo, vT2), (vPp, vRp)):
            for i in range(8):
                f += [f"v_lshlrev_b32 v{vT1}, 16, v{base+i}", f"v_and_b32 v{vT3}, 0xffff0000, v{base+i}",
                      f"v_mul_f32 v{vT1}, v{fac}, v{vT1}", f"v_mul_f32 v{vT3}, v{fac}, v{vT3}",
                      f"v_cvt_pk_bf16_f32 v{base+i}, v{vT1}, v{vT3}"]
        f += ["s_nop 1", "s_setpc_b64 s[52:53]" if tag == "" else f"s_branch L_rbb{tag}"]
        return f
    def rareA(tag):
        return [f"L_ra{tag}:",
             f"v_mov_b32 v{vT1}, v{vT0}", "s_nop 1", f"v_permlane32_swap_b32 v{vT0}, v{vT1}",
             f"v_max_f32 v{vT0}, v{vT0}, v{vT1}", f"v_mul_f32 v{vT0}, {sC}, v{vT0}", f"v_ceil_f32 v{vT0}, v{vT0}",
             f"v_max_f32 v{vT0}, v{vT0}, v{vMC}", f"v_sub_f32 v{vT1}, v{vMC}, v{vT0}", f"v_exp_f32 v{vT1}, v{vT1}",
             f"v_mov_b32 v{vMC}, v{vT0}", f"v_add_f32 v{vMT}, s33, v{vT0}", f"v_mul_f32 v{vMT}, s35, v{vMT}",
             f"v_mul_f32 v{vLs}, v{vT1}, v{vLs}", f"s_branch L_rab{tag}"]
    def bcheck(tag, nO):
        rare.extend(rareB(tag, nO))
        return ["WAIT rl", f"v_max_f32 v{vT3}, v{vRp}, v{vMC}", f"v_cmp_neq_f32 vcc, v{vT3}, v{vMO}", f"s_cbranch_vccnz L_rb{tag}", f"L_rbb{tag}:"]
    xr = [f"ds_read_b64 {r(vRp,2)}, v{vAR} offset:2048 ;@rl", f"ds_read_b128 {r(vPp,4)}, v{vAR} ;@p0", f"ds_read_b128 {r(vPp+4,4)}, v{vAR} offset:1024 ;@p1"]
    def body(tag, dts):
        f = ["s_waitcnt lgkmcnt(0)", "s_barrier"]
        vo = [vread(0, k2, dt, u) for k2 in range(2) for dt in dts for u in range(2)]
        vp = [vread(1, k2, dt, u) for k2 in range(2) for dt in dts for u in range(2)]
        mx = [f"v_max3_f32 v{vT0}, {S(0)}, {S(1)}, {S(2)}", f"v_max3_f32 v{vT1}, {S(3)}, {S(4)}, {S(5)}"]
        for k in range(6, 16, 2): mx.append(f"v_max3_f32 v{vT0+((k//2+1)&1)}, v{vT0+((k//2+1)&1)}, {S(k)}, {S(k+1)}")
        mx.append(f"v_max_f32 v{vT0}, v{vT0}, v{vT1}")
        f += xr + vo[:4]
        f += merge(mx, vo[4:])
        f += bcheck(tag, 16*len(dts))
        if len(dts) == 2: f.append(f"v_add_f32 v{vLn}, v{vLs}, v{vRl}")
        f += [f"v_cmp_gt_f32 vcc, v{vT0}, v{vMT}", f"s_cbranch_vccnz L_ra{tag}", f"L_rab{tag}:"]
        rare.extend(rareA(tag))
        fm = [f"v_fma_f32 {X(i)}, {S(i)}, {sC}, -v{vMC}" for i in range(16)]
        pvo = []
        for k2 in range(2):
            for dt in dts: pvo.append([f"WAIT v0{k2}{dt}1", pv(0, k2, dt)])
        seg = merge(fm, [kread(m) for m in range(8)])
        seg2 = []
        step = len(seg) // len(pvo)
        for i, x in enumerate(seg):
            if i % step == 0 and i // step < len(pvo): seg2 += pvo[i // step]
            seg2.append(x)
        f += seg2
        e = []; pend = []
        for i in range(16):
            e.append(f"v_exp_f32 {X(i)}, {X(i)}")
            e += pend; pend = [f"v_add_f32 v{vLs}, v{vLs}, {X(i)}"]
            if i % 2 == 1: pend.append(f"v_cvt_pk_bf16_f32 v{vPo+i//2}, {X(i-1)}, {X(i)}")
        upd = ["s_add_u32 s31, s28, s48", f"s_cmp_ge_u32 s31, {3*U}", "s_cselect_b32 s31, s49, s48", "s_add_u32 s28, s28, s31"]
        upd += [f"v_add_u32 v{vAK+m}, s31, v{vAK+m}" for m in range(8)]
        e += upd[:1] + pend + pw + upd[1:]
        upd2 = ["s_add_u32 s31, s29, s48", f"s_cmp_ge_u32 s31, {3*U}", "s_cselect_b32 s31, s49, s48", "s_add_u32 s29, s29, s31",
                f"v_add_u32 v{vAV}, s31, v{vAV}", f"v_add_u32 v{vAV+1}, s31, v{vAV+1}",
                f"v_add_u32 v{vAR}, s30, v{vAR}", "s_sub_u32 s30, 0, s30", f"v_add_u32 v{vAW}, s30, v{vAW}"]
        e += upd2
        e = merge(e, vp, 0.35)
        mf = [[f"WAIT k{m}", qk(m)] for m in range(8)]
        for k2 in range(2):
            for dt in dts: mf.append([f"WAIT v1{k2}{dt}1", pv(1, k2, dt)])
        tot = sum(cost(x) for x in e); acc = 0; k = 0
        for x in e:
            while k < len(mf) and acc >= tot * 0.97 * k / len(mf):
                f += mf[k]; k += 1
            f.append(x); acc += cost(x)
        for g in mf[k:]: f += g
        f = fix_lgkm(f)
        if drop: f = [z for z in f if not z.startswith(tuple(drop))]
        return f
    pre = list(L)
    kl = body("K", (0, 1))
    A("L_kloop:")
    nk_iter = NK + 1 if ND > 0 else NK
    kl_end = ["s_add_u32 s32, s32, 1", f"s_cmp_lt_u32 s32, {nk_iter}", "s_cbranch_scc1 L_kloop"]
    L.extend(kl + kl_end)
    send = [f"buffer_store_dwordx4 {r(vO+16+4*i,4)}, v7, s[8:11], 0 offen offset:{1024*i}{xpol}" for i in range(4)]
    send.append(f"v_add_u32 v1, 4096, v1")
    send.append(f"buffer_store_dwordx2 {r(vMO,2)}, v1, s[8:11], 0 offen{xpol}")
    flagset = ["s_cmp_lg_u32 s3, 0", "s_cbranch_scc1 L_nf",
               "s_and_b32 s25, s2, 3", "s_lshl_b32 s25, s25, 3", "s_lshl_b32 s25, 1, s25", "s_and_b32 s26, s2, 0xfc",
               f"v_mov_b32 v{vT1}, s25", f"v_mov_b32 v{vT2}, s26", "s_mov_b64 exec, 1",
               f"global_atomic_or v{vT2}, v{vT1}, s[40:41] sc1", "s_mov_b64 exec, -1", "L_nf:"]
    poll = ["s_xor_b32 s25, s2, 8", f"v_mov_b32 v5, s25", f"global_load_ubyte v3, v5, s[40:41] sc1"]
    chk = ["s_mov_b32 s26, 0", "L_chk:", "s_waitcnt vmcnt(0)", "v_readfirstlane_b32 s25, v3", "s_cmp_lg_u32 s25, 0", "s_cbranch_scc1 L_got",
           "s_add_u32 s26, s26, 1", "s_cmp_gt_u32 s26, 0x40000", "s_cbranch_scc1 L_got",
           "s_sleep 2", f"global_load_ubyte v3, v5, s[40:41] sc1", "s_branch L_chk", "L_got:"]
    chk += [f"buffer_load_dwordx4 {r(vO+16+4*i,4)}, v7, s[36:39], 0 offen offset:{1024*i}{xpol}" for i in range(4)]
    chk.append(f"buffer_load_dwordx2 {r(vRR,2)}, v1, s[36:39], 0 offen{xpol}")
    mid = []
    dl = []
    if ND > 0:
        mid = ["s_nop 7", "s_nop 3"] + send
        L.extend(mid)
        dl = body("D", (0,))
        a0, a1, a2 = act
        assert 1 <= a0 <= a1 < a2 <= ND - 1
        A("L_dloop:")
        dl2 = ["s_waitcnt vmcnt(0)"] if False else []
        L.extend(dl)
        A("s_add_u32 s32, s32, 1")
        for idx, lab in ((a0 - 1, "L_a0"), (a0, "L_a1"), (a1, "L_a2"), (a2, "L_a3")):
            pass
        acts = {}
        def addact(i, code): acts.setdefault(i, []).extend(code)
        addact(a0, ["s_waitcnt vmcnt(0)"])
        addact(a0 + 1, flagset)
        addact(a1 + 1, poll)
        addact(a2 + 1 if a2 + 1 <= ND - 1 else ND - 1, chk)
        assert a1 + 1 < (a2 + 1 if a2 + 1 <= ND - 1 else ND - 1) or True
        for i in sorted(acts):
            if i < ND - 1:
                A(f"s_cmp_eq_u32 s32, {NK + 1 + i}"); A(f"s_cbranch_scc1 L_act{i}")
                rare.extend([f"L_act{i}:"] + acts[i] + ["s_branch L_dloop"])
        A(f"s_cmp_lt_u32 s32, {NT}")
        A("s_cbranch_scc1 L_dloop")
        if ND - 1 in acts: L.extend(acts[ND - 1])
        assert max(acts) <= ND - 1
    dts = (0,) if ND > 0 else (0, 1)
    T = ["s_waitcnt lgkmcnt(0)", "s_barrier"]
    vo = [vread(0, k2, dt, u) for k2 in range(2) for dt in dts for u in range(2)]
    vp = [vread(1, k2, dt, u) for k2 in range(2) for dt in dts for u in range(2)]
    T += xr + vo
    if ND > 0: T += vp
    T += bcheck("F", 16*len(dts))
    mfs = []
    for w in range(2):
        for k2 in range(2):
            for dt in dts: mfs.append([f"WAIT v{w}{k2}{dt}1", pv(w, k2, dt)])
    fin = [f"v_max_f32 v{vT3}, v{vMO}, v{vRR}", f"v_sub_f32 v{vT1}, v{vMO}, v{vT3}", f"v_sub_f32 v{vT2}, v{vRR}, v{vT3}",
           f"v_exp_f32 v{vT1}, v{vT1}", f"v_exp_f32 v{vT2}, v{vT2}", "s_nop 0",
           f"v_mul_f32 v{vT0}, v{vT1}, v{vLn}", f"v_fmac_f32 v{vT0}, v{vT2}, v{vRR+1}",
           f"v_mov_b32 v{vT3}, v{vT0}", "s_nop 1", f"v_permlane32_swap_b32 v{vT0}, v{vT3}", f"v_add_f32 v{vT0}, v{vT0}, v{vT3}",
           f"v_rcp_f32 v{vT0}, v{vT0}", "s_nop 0", f"v_mul_f32 v{vT1}, v{vT0}, v{vT1}", f"v_mul_f32 v{vT2}, v{vT0}, v{vT2}"]
    fin += [f"v_mul_f32 v{vO+16+i}, v{vT2}, v{vO+16+i}" for i in range(16)]
    T.append(f"v_add_f32 v{vLn}, v{vLs}, v{vRl}")
    if ND > 0:
        T += mfs[0] + mfs[1] + ["s_waitcnt vmcnt(0)"] + fin[:8] + mfs[2] + fin[8:16] + mfs[3] + fin[16:]
    else:
        for g in mfs[:4]: T += g
        T += vp
        for g in mfs[4:]: T += g
        T += ["s_nop 7", "s_nop 3"] + send + ["s_waitcnt vmcnt(0)", "s_barrier"] + flagset + poll + chk + ["s_waitcnt vmcnt(0)"] + fin
    for g2 in range(2):
        b = vO + 8*g2; d = vS + 4*g2
        for i in range(8): T.append(f"v_fma_f32 v{b+i}, v{b+i}, v{vT1}, v{b+16+i}")
        for i in range(4): T.append(f"v_cvt_pk_bf16_f32 v{d+i}, v{b+2*i}, v{b+2*i+1}")
        T.append("s_nop 1")
        T.append(f"v_permlane32_swap_b32 v{d}, v{d+2}")
        T.append(f"v_permlane32_swap_b32 v{d+1}, v{d+3}")
        T.append(f"buffer_store_dwordx4 {r(d,4)}, v6, s[12:15], 0 offen offset:{g2*32}{stpol}")
    T = fix_lgkm(T)
    L.extend(T)
    errs = hazard.check(pre[pre.index("L_compute:"):] + kl + kl_end + kl + kl_end + mid + dl + ["s_add_u32 s32, s32, 1", "s_cmp_lt_u32 s32, 1", "s_cbranch_scc1 x"] + dl + ["s_add_u32 s32, s32, 1", "s_cmp_lt_u32 s32, 1", "s_cbranch_scc1 x"] + T, "compute") \
        + hazard.check(pre[:pre.index("L_compute:")], "loader") + hazard.check(rare, "rare")
    if not drop:
        for e in errs: print("HAZARD", e)
    if stamps:
        A("s_waitcnt vmcnt(0)")
        A("s_memrealtime s[46:47]")
        A("s_memtime s[52:53]")
        A("s_cmp_lg_u32 s3, 2"); A("s_cbranch_scc1 L_end")
        A("s_waitcnt lgkmcnt(0)")
        A("v_mov_b32 v8, s44"); A("v_mov_b32 v9, s45"); A("v_mov_b32 v10, s46"); A("v_mov_b32 v11, s47")
        A("s_lshl_b32 s16, s2, 4"); A("s_add_u32 s16, s16, 0x8000000")
        A("v_mov_b32 v12, s16")
        A("s_mov_b64 exec, 1")
        A("global_store_dwordx4 v12, v[8:11], s[42:43]")
        A("v_mov_b32 v16, s50"); A("v_mov_b32 v17, s51"); A("v_mov_b32 v18, s52"); A("v_mov_b32 v19, s53")
        A("v_add_u32 v12, 0x10000, v12")
        A("global_store_dwordx4 v12, v[16:19], s[42:43]")
    A("L_end:")
    A("s_endpgm")
    L.extend(rare)
    body_ = "\n".join("    " + x if not x.endswith(":") else x for x in L)
    return wrap(body_, 256, 512, LDS, vgpr=NV, sgpr=64), LDS

if __name__ == "__main__":
    vs = {"v4k16": dict(NK=16), "v4k12": dict(NK=12, act=(1, 3, 5)), "v4k13": dict(NK=13, act=(1, 2, 4))}
    for name, kw in vs.items():
        asm, lds = gen(**kw)
        open(f"{name}.s", "w").write(asm)
        build(asm, f"{name}.co")
        asm, lds = gen(stamps=True, tl=True, **kw)
        build(asm, f"{name}_t.co")
        print(name, lds)
```

```python
import sys, struct, math
from asmlib import *
import hazard
from gen4 import f32bits, cost, merge, fix_lgkm

def gen(pol=" nt", stamps=False, tl=False, nomem=False, THR=8.0, stpol="", drop=(), W=15, G=2, summode="dot", prescale=True, phase=False):
    L = []
    A = L.append
    NT = 32
    U = 16384
    VB = 4 * U
    VU = 8192
    QB = VB + 4 * VU
    PX = QB + U
    PXS = 12288
    LDS = PX + 2 * PXS
    C = (128 ** -0.5) * math.log2(math.e)
    vQ, vK, vV, vS, vX, vPo, vPp, vO, vC, vAK, vAV = 8, 40, 72, 88, 104, 120, 128, 136, 152, 168, 176
    vMC, vLs, vRp, vRl, vMO, vT0, vT1, vT2, vT3, vAW, vAR = 178, 179, 180, 181, 182, 183, 184, 185, 186, 187, 188
    NV = 190
    def r(b, n): return f"v[{b}:{b+n-1}]"
    sC = "s34"
    A("s_cmp_ge_u32 s2, 256")
    A("s_cbranch_scc1 L_end")
    A("s_load_dwordx4 s[4:7], s[0:1], 8")
    A("s_load_dwordx2 s[16:17], s[0:1], 0")
    A("s_load_dwordx2 s[18:19], s[0:1], 24")
    if stamps:
        A("s_load_dwordx4 s[40:43], s[0:1], 32")
        A("s_memrealtime s[44:45]")
        A("s_memtime s[50:51]")
    A("v_lshrrev_b32 v1, 6, v0")
    A("v_and_b32 v2, 63, v0")
    A("s_lshr_b32 s21, s2, 4")
    A("v_readfirstlane_b32 s3, v1")
    A("s_lshl_b32 s21, s21, 3")
    A("s_and_b32 s22, s2, 7")
    A("s_or_b32 s21, s21, s22")
    A("s_bfe_u32 s22, s2, 0x10003")
    A("s_cmp_ge_u32 s3, 4")
    A("s_cbranch_scc1 L_compute")
    if tl: A("v_mov_b32 v20, 0")
    A("s_lshl_b32 s20, s21, 19")
    A("s_lshl_b32 s26, s3, 12")
    A("v_and_b32 v3, 15, v2")
    A("v_lshrrev_b32 v4, 4, v2")
    A("v_lshlrev_b32 v5, 8, v4")
    A("v_xor_b32 v6, v3, v4")
    for j in range(4):
        A(f"v_xor_b32 v7, {4*j}, v6")
        A(f"v_lshl_add_u32 v{8+j}, v7, 4, v5")
    A("s_lshl_b32 s24, s21, 14")
    A("s_add_u32 s20, s20, s26")
    A("s_add_u32 s24, s24, s26")
    nr = 0 if nomem else 0x80000
    A("s_mov_b32 s11, 0x20000"); A("s_mov_b32 s15, 0x20000"); A("s_mov_b32 s39, 0x20000"); A("s_mov_b32 s38, 4096")
    A(f"s_sub_u32 s10, {nr}, s26" if not nomem else "s_mov_b32 s10, 0")
    A("s_mov_b32 s14, 0")
    A(f"s_add_u32 m0, s26, {QB}")
    A("s_waitcnt lgkmcnt(0)")
    A("s_add_u32 s36, s16, s24"); A("s_addc_u32 s37, s17, 0")
    A("s_add_u32 s8, s4, s20"); A("s_addc_u32 s9, s5, 0")
    loads = []
    def unitK(j):
        fb = j - 4 if j >= 4 else -99
        for i in range(4):
            pre = [f"s_add_u32 m0, s26, {(j % 4) * U}", f"s_mov_b32 s30, {j * U}"] if i == 0 else []
            loads.append((pre, f"buffer_load_dwordx4 v{8+i}, s[8:11], s30 offen offset:{i*1024}{pol} lds", fb, f"K{j}"))
    def unitV(j):
        fb = j - 2 if j >= 3 else -99
        for i in range(2):
            pre = [f"s_add_u32 m0, s27, {(j % 4) * VU}", f"s_mov_b32 s31, {max(j,0) * U}"] if i == 0 else []
            if i == 0 and j == 0: pre.append("s_mov_b32 s14, s10")
            loads.append((pre, f"buffer_load_dwordx4 v{12+i}, s[12:15], s31 offen offset:{i*1024}{pol} lds", fb, f"V{j}"))
    for i in range(4):
        loads.append(([], f"buffer_load_dwordx4 v{8+i}, s[36:39], 0 offen offset:{i*1024} lds", -99, "Q"))
    vsetup = ["s_add_u32 s12, s6, s20", "s_addc_u32 s13, s7, 0",
              "v_lshrrev_b32 v4, 3, v2", "v_and_b32 v3, 7, v2", "v_and_b32 v5, 2, v4", "v_lshlrev_b32 v5, 1, v5", "v_xor_b32 v3, v3, v5",
              "v_lshlrev_b32 v4, 8, v4", "v_lshl_add_u32 v12, v3, 4, v4", "s_lshl_b32 s23, s22, 7", "v_add_u32 v12, s23, v12", "v_add_u32 v13, 1024, v12",
              "s_lshl_b32 s27, s3, 11", f"s_add_u32 s27, s27, {VB}"]
    unitK(0)
    for s in range(0, NT + 1):
        if s + 1 < NT: unitK(s + 1)
        n0 = len(loads)
        unitV(s - 1)
        if s == 0:
            p, l, fb, t = loads[n0]; loads[n0] = (vsetup + p, l, fb, t)
    last = {}
    for i, x in enumerate(loads): last[x[3]] = i
    bars = [(-2, last["Q"]), (-1, last["K0"])]
    for s in range(0, NT + 1):
        bars.append((s, max(last.get(f"K{s+1}", -1), last[f"V{s-1}"])))
    i = 0; bi = 0; done = -1; passed = -98; nb = 0
    n = len(loads)
    while bi < len(bars):
        b, cb = bars[bi]
        g = min(G, n - i)
        can_issue = g > 0 and all(loads[k][2] <= passed for k in range(i, i + g))
        ci = i + g - 1 - W
        if can_issue and (ci < cb or cb >= i):
            if ci > done:
                A(f"s_waitcnt vmcnt({i - 1 - ci})"); done = ci
            for k in range(i, i + g):
                for z in loads[k][0]: A(z)
                A(loads[k][1])
            i += g
        else:
            assert cb < i
            if cb > done:
                A(f"s_waitcnt vmcnt({i - 1 - cb})"); done = cb
            A("s_barrier")
            if tl:
                A("s_memrealtime s[46:47]"); A("s_waitcnt lgkmcnt(0)"); A(f"v_writelane_b32 v20, s46, {nb}")
            nb += 1
            passed = b; bi += 1
    assert i == n
    if tl:
        A("s_cmp_lg_u32 s3, 0"); A("s_cbranch_scc1 L_end")
        A("s_lshl_b32 s16, s2, 8"); A("s_add_u32 s16, s16, 0x8040000")
        A("v_lshl_add_u32 v21, v2, 2, s16")
        A("global_store_dword v21, v20, s[42:43]")
    A("s_endpgm")
    A("L_compute:")
    A("s_sub_u32 s3, s3, 4")
    A("s_and_b32 s23, s3, 1")
    A("s_lshr_b32 s24, s3, 1")
    A("s_lshl_b32 s20, s21, 14")
    A("s_lshl_b32 s25, s23, 13")
    A("s_add_u32 s20, s20, s25")
    A("v_and_b32 v3, 31, v2")
    A("v_lshrrev_b32 v4, 5, v2")
    A("v_lshlrev_b32 v5, 8, v3")
    A("v_lshl_add_u32 v6, v4, 4, v5")
    A("s_lshl_b32 s26, s22, 7")
    A("s_add_u32 s20, s20, s26")
    A("s_lshl_b32 s26, s24, 6")
    A("s_add_u32 s20, s20, s26")
    A("v_and_b32 v7, 15, v2")
    A("v_xor_b32 v7, v7, v4")
    A(f"s_add_u32 s25, s25, {QB}")
    A("v_add_u32 v5, s25, v5")
    for m in range(8):
        A(f"v_xor_b32 v1, {2*m}, v7")
        A(f"v_lshl_add_u32 v{vAK+m}, v1, 4, v5")
    A("s_lshl_b32 s26, s24, 13")
    A("s_sub_u32 s27, s26, s25")
    A("v_bfe_u32 v1, v2, 2, 2")
    A("v_lshl_add_u32 v5, v4, 2, v1")
    A("v_lshlrev_b32 v5, 7, v5")
    A("v_bfe_u32 v3, v2, 4, 1")
    A("v_lshl_add_u32 v5, v3, 5, v5")
    A("v_and_b32 v3, 3, v2")
    A("v_lshl_add_u32 v5, v3, 3, v5")
    A("v_lshrrev_b32 v1, 1, v1")
    A("v_xor_b32 v1, s24, v1")
    A("v_lshl_add_u32 v5, v1, 6, v5")
    A("s_lshl_b32 s25, s24, 12")
    A(f"s_add_u32 s25, s25, {VB}")
    A(f"v_add_u32 v{vAV}, s25, v5")
    A(f"v_xor_b32 v{vAV+1}, 4096, v{vAV}")
    A(f"s_mul_i32 s25, s3, 3072")
    A(f"s_add_u32 s25, s25, {PX}")
    A(f"v_lshl_add_u32 v{vAW}, v2, 4, s25")
    A("s_xor_b32 s26, s3, 2")
    A(f"s_mul_i32 s25, s26, 3072")
    A(f"s_add_u32 s25, s25, {PX}")
    A(f"v_lshl_add_u32 v{vAR}, v2, 4, s25")
    A(f"s_mov_b32 s34, 0x{f32bits(C):08x}")
    A(f"s_mov_b32 s33, 0x{f32bits(THR):08x}")
    A("s_mov_b32 s35, 0x3f803f80")
    for i in range(16): A(f"v_mov_b32 v{vO+i}, 0")
    for i in range(8): A(f"v_mov_b32 v{vPo+i}, 0")
    A(f"v_mov_b32 v{vLs}, 0")
    A(f"v_mov_b32 v{vMO}, 0xff800000")
    A("s_mov_b32 s32, 0")
    A("s_waitcnt lgkmcnt(0)")
    A("s_add_u32 s12, s18, s20"); A("s_addc_u32 s13, s19, 0"); A(f"s_mov_b32 s14, {8192-192}"); A("s_mov_b32 s15, 0x20000")
    def pw(j):
        o = (j % 2) * PXS
        return [f"ds_write_b128 v{vAW}, {r(vPo,4)} offset:{o}", f"ds_write_b128 v{vAW}, {r(vPo+4,4)} offset:{o+1024}", f"ds_write_b64 v{vAW}, {r(vMC,2)} offset:{o+2048}"]
    def xr(j):
        o = (j % 2) * PXS
        return [f"ds_read_b64 {r(vRp,2)}, v{vAR} offset:{o+2048} ;@rl", f"ds_read_b128 {r(vPp,4)}, v{vAR} offset:{o} ;@p0", f"ds_read_b128 {r(vPp+4,4)}, v{vAR} offset:{o+1024} ;@p1"]
    def kread(j, m): return f"ds_read_b128 {r(vK+4*m,4)}, v{vAK+m} offset:{(j%4)*U} ;@k{m}"
    def vread(j, w, k2, u): return f"ds_read_b64_tr_b16 {r(vV+(w*2+k2)*4+2*u,2)}, v{vAV+w} offset:{(j%4)*VU+k2*2048+u*1024} ;@v{w}{k2}{u}"
    def qk(m, first=False):
        c = ("0" if first else r(vC,16)) if m == 0 else r(vS,16)
        return f"v_mfma_f32_32x32x16_bf16 {r(vS,16)}, {r(vK+4*m,4)}, {r(vQ+4*m,4)}, {c}"
    def pv(w, k2):
        p = (vPo if w == 0 else vPp) + 4*k2
        return f"v_mfma_f32_32x32x16_bf16 {r(vO,16)}, {r(vV+(w*2+k2)*4,4)}, {r(p,4)}, {r(vO,16)}"
    S = lambda i: f"v{vS+i}"
    X = lambda i: f"v{vX+i}"
    mx = [f"v_max3_f32 v{vT0}, {S(0)}, {S(1)}, {S(2)}", f"v_max3_f32 v{vT1}, {S(3)}, {S(4)}, {S(5)}"]
    for k in range(6, 16, 2): mx.append(f"v_max3_f32 v{vT0+((k//2+1)&1)}, v{vT0+((k//2+1)&1)}, {S(k)}, {S(k+1)}")
    mx.append(f"v_max_f32 v{vT0}, v{vT0}, v{vT1}")
    A("s_barrier")
    for m in range(8): A(f"ds_read_b128 {r(vQ+4*m,4)}, v{vAK+m}")
    for m in range(8): A(f"v_add_u32 v{vAK+m}, s27, v{vAK+m}")
    for i in range(32):
        if i % 4 == 0: A(f"s_waitcnt lgkmcnt({7 - i//4})")
        t = vX + 2*(i % 4)
        A(f"v_lshlrev_b32 v{t}, 16, v{vQ+i}"); A(f"v_and_b32 v{t+1}, 0xffff0000, v{vQ+i}")
        A(f"v_mul_f32 v{t}, {sC}, v{t}"); A(f"v_mul_f32 v{t+1}, {sC}, v{t+1}")
        A(f"v_cvt_pk_bf16_f32 v{vQ+i}, v{t}, v{t+1}")
    A("s_barrier")
    for m in range(8): A(kread(0, m).split(";@")[0])
    for m in range(8):
        A(f"s_waitcnt lgkmcnt({7-m})"); A(qk(m, True))
    A("s_nop 7"); A("s_nop 3")
    for x in mx: A(x)
    A(f"v_mov_b32 v{vT1}, v{vT0}"); A("s_nop 1"); A(f"v_permlane32_swap_b32 v{vT0}, v{vT1}")
    A(f"v_max_f32 v{vT0}, v{vT0}, v{vT1}"); A(f"v_ceil_f32 v{vMC}, v{vT0}")
    for x in pw(-1): A(x)
    for i in range(16): A(f"v_sub_f32 {S(i)}, {S(i)}, v{vMC}")
    rare = []
    def rareB(tag, final=False):
        f = [f"L_rb{tag}:", "s_waitcnt lgkmcnt(0)", "s_nop 7",
             f"v_sub_f32 v{vT1}, v{vMO}, v{vT3}", f"v_sub_f32 v{vT2}, v{vMC}, v{vT3}", f"v_sub_f32 v{vRp}, v{vRp}, v{vT3}"]
        if not final:
            f += [f"v_add_f32 {S(i)}, {S(i)}, v{vT2}" for i in range(16)]
            f += [f"v_add_f32 v{vT0}, v{vT0}, v{vT2}"]
            f += [f"v_sub_f32 v{vC+i}, 0, v{vT3}" for i in range(16)]
        f += [f"v_exp_f32 v{vT1}, v{vT1}", f"v_exp_f32 v{vT2}, v{vT2}", f"v_exp_f32 v{vRp}, v{vRp}",
             f"v_mov_b32 v{vMC}, v{vT3}", f"v_mov_b32 v{vMO}, v{vT3}"]
        if tag == "0":
            f += ["s_cmp_eq_u32 s32, 0", f"s_cbranch_scc1 L_rbb{tag}"]
        f += [f"v_mul_f32 v{vLs}, v{vT2}, v{vLs}", f"v_mul_f32 v{vRl}, v{vRp}, v{vRl}"]
        f += [f"v_mul_f32 v{vO+i}, v{vT1}, v{vO+i}" for i in range(16)]
        for base, fac in ((vPo, vT2), (vPp, vRp)):
            for i in range(8):
                f += [f"v_lshlrev_b32 v{vT1}, 16, v{base+i}", f"v_and_b32 v{vT3}, 0xffff0000, v{base+i}",
                      f"v_mul_f32 v{vT1}, v{fac}, v{vT1}", f"v_mul_f32 v{vT3}, v{fac}, v{vT3}",
                      f"v_cvt_pk_bf16_f32 v{base+i}, v{vT1}, v{vT3}"]
        f += ["s_nop 1", f"s_branch L_rbb{tag}"]
        return f
    def rareA(tag):
        f = [f"L_ra{tag}:",
             f"v_mov_b32 v{vT1}, v{vT0}", "s_nop 1", f"v_permlane32_swap_b32 v{vT0}, v{vT1}",
             f"v_max3_f32 v{vT0}, v{vT0}, v{vT1}, 0", f"v_ceil_f32 v{vT0}, v{vT0}",
             f"v_sub_f32 v{vT1}, 0, v{vT0}", f"v_exp_f32 v{vT1}, v{vT1}",
             f"v_add_f32 v{vMC}, v{vMC}, v{vT0}"]
        f += [f"v_sub_f32 {S(i)}, {S(i)}, v{vT0}" for i in range(16)]
        f += [f"v_sub_f32 v{vC+i}, 0, v{vMC}" for i in range(16)]
        f += [f"v_mul_f32 v{vLs}, v{vT1}, v{vLs}", "s_nop 2", f"s_branch L_rab{tag}"]
        return f
    def bcheck(tag, final=False):
        rare.extend(rareB(tag, final))
        return ["WAIT rl", f"v_max_f32 v{vT3}, v{vRp}, v{vMC}", f"v_cmp_neq_f32 vcc, v{vT3}, v{vMO}", f"s_cbranch_vccnz L_rb{tag}", f"L_rbb{tag}:"]
    def body(j):
        tag = str(j)
        f = ["s_waitcnt lgkmcnt(0)", "s_barrier"]
        vo = [vread(j-1, 0, k2, u) for k2 in range(2) for u in range(2)]
        vp = [vread(j-1, 1, k2, u) for k2 in range(2) for u in range(2)]
        f += xr(j-1) + vo + vp[:1]
        f += merge(mx, vp[1:])
        f += bcheck(tag)
        f += [f"v_cmp_lt_f32 vcc, s33, v{vT0}", f"s_cbranch_vccnz L_ra{tag}", f"L_rab{tag}:"]
        rare.extend(rareA(tag))
        ex = [f"v_exp_f32 {X(i)}, {S(i)}" for i in range(16)]
        seg = merge(ex, [kread(j+1, m) for m in range(8)], 0.8)
        pvs = [[f"WAIT v{w}{k2}1", pv(w, k2)] for w in range(2) for k2 in range(2)]
        step = len(seg) // 4
        for i, x in enumerate(seg):
            if i % step == 0 and i // step < 4: f += pvs[i // step]
            f.append(x)
        e = []
        for i in range(8):
            e.append(f"v_cvt_pk_bf16_f32 v{vPo+i}, {X(2*i)}, {X(2*i+1)}")
            if summode == "add":
                e += [f"v_add_f32 v{vLs}, v{vLs}, {X(2*i)}", f"v_add_f32 v{vLs}, v{vLs}, {X(2*i+1)}"]
        w = pw(j)
        if summode == "dot":
            d = [f"v_dot2c_f32_bf16 v{vLs}, s35, v{vPo+i}" for i in range(8)]
            e = e[:4] + [w[0]] + e[4:] + [w[1]] + d + ["s_nop 2", w[2]]
        else:
            e = e[:12] + [w[0]] + e[12:] + [w[1], w[2]]
        mf = [[f"WAIT k{m}", qk(m)] for m in range(8)]
        tot = sum(cost(x) for x in e); acc = 0; k = 0
        for x in e:
            while k < len(mf) and acc >= tot * 1.0 * k / len(mf):
                f += mf[k]; k += 1
            f.append(x); acc += cost(x)
        for g in mf[k:]: f += g
        f = fix_lgkm(f)
        if drop: f = [z for z in f if not z.startswith(tuple(drop))]
        return f
    pre = list(L)
    A("L_loop:")
    lp = []
    for j in range(4): lp += body(j)
    lp += ["s_add_u32 s32, s32, 1", "s_cmp_lt_u32 s32, 8", "s_cbranch_scc1 L_loop"]
    L.extend(lp)
    T = ["s_waitcnt lgkmcnt(0)", "s_barrier"]
    T += xr(NT-1) + [vread(NT-1, w, k2, u) for w in range(2) for k2 in range(2) for u in range(2)]
    T += bcheck("F", True)
    mfs = [[f"WAIT v{w}{k2}1", pv(w, k2)] for w in range(2) for k2 in range(2)]
    fin = [f"v_add_f32 v{vT0}, v{vLs}, v{vRl}", f"v_mov_b32 v{vT3}, v{vT0}", "s_nop 1", f"v_permlane32_swap_b32 v{vT0}, v{vT3}", f"v_add_f32 v{vT0}, v{vT0}, v{vT3}", f"v_rcp_f32 v{vT0}, v{vT0}"]
    T += mfs[0] + fin + mfs[1] + mfs[2] + mfs[3] + ["s_nop 7", "s_nop 3"]
    for g2 in range(2):
        b = vO + 8*g2; d = vX + 4*g2
        for i in range(8): T.append(f"v_mul_f32 v{b+i}, v{vT0}, v{b+i}")
        for i in range(4): T.append(f"v_cvt_pk_bf16_f32 v{d+i}, v{b+2*i}, v{b+2*i+1}")
        T.append("s_nop 1")
        T.append(f"v_permlane32_swap_b32 v{d}, v{d+2}")
        T.append(f"v_permlane32_swap_b32 v{d+1}, v{d+3}")
        T.append(f"buffer_store_dwordx4 {r(d,4)}, v6, s[12:15], 0 offen offset:{g2*32}{stpol}")
    T = fix_lgkm(T)
    L.extend(T)
    errs = hazard.check(pre[pre.index("L_compute:"):] + lp + lp + T, "compute") + hazard.check(pre[:pre.index("L_compute:")], "loader") + hazard.check(rare, "rare")
    if not drop:
        for e in errs: print("HAZARD", e)
    if stamps:
        A("s_waitcnt vmcnt(0)")
        A("s_memrealtime s[46:47]")
        A("s_memtime s[52:53]")
        A("s_cmp_lg_u32 s3, 2"); A("s_cbranch_scc1 L_end")
        A("s_waitcnt lgkmcnt(0)")
        A("v_mov_b32 v8, s44"); A("v_mov_b32 v9, s45"); A("v_mov_b32 v10, s46"); A("v_mov_b32 v11, s47")
        A("s_lshl_b32 s16, s2, 4"); A("s_add_u32 s16, s16, 0x8000000")
        A("v_mov_b32 v12, s16")
        A("s_mov_b64 exec, 1")
        A("global_store_dwordx4 v12, v[8:11], s[42:43]")
        A("v_mov_b32 v16, s50"); A("v_mov_b32 v17, s51"); A("v_mov_b32 v18, s52"); A("v_mov_b32 v19, s53")
        A("v_add_u32 v12, 0x10000, v12")
        A("global_store_dwordx4 v12, v[16:19], s[42:43]")
    A("L_end:")
    A("s_endpgm")
    L.extend(rare)
    body_ = "\n".join("    " + x if not x.endswith(":") else x for x in L)
    return wrap(body_, 256, 512, LDS, vgpr=NV, sgpr=64), LDS

if __name__ == "__main__":
    vs = {"v5a": dict(), "v5add": dict(summode="add"), "v5w12": dict(W=12), "v5w18": dict(W=18)}
    for name, kw in vs.items():
        asm, lds = gen(**kw)
        open(f"{name}.s", "w").write(asm)
        build(asm, f"{name}.co")
        asm, lds = gen(stamps=True, tl=True, **kw)
        build(asm, f"{name}_t.co")
        print(name, lds)
    asm, lds = gen(stamps=True, tl=True, nomem=True)
    build(asm, "v5nm_t.co")
```

```python
import sys, struct, math
from asmlib import *
import hazard

def f32bits(x):
    return struct.unpack("<I", struct.pack("<f", x))[0]

def cost(x):
    if x.endswith(":"): return 0
    if x.startswith(("v_exp", "v_rcp")): return 2
    if x.startswith("s_nop"): return int(x.split()[1]) + 1
    return 1

def merge(main, extra, frac=1.0, start=0.0):
    tot = sum(cost(x) for x in main)
    out = []; acc = 0; k = 0
    n = len(extra)
    for x in main:
        while k < n and acc >= tot * (start + (frac - start) * k / n) and not x.endswith(":"):
            out.append(extra[k]); k += 1
        out.append(x); acc += cost(x)
    out += extra[k:]
    return out

def fix_lgkm(seq):
    out = []; issued = []; done = -1
    for x in seq:
        if x.startswith("WAIT "):
            tag = x.split()[1]
            idx = max(i for i, t in enumerate(issued) if t == tag)
            if idx <= done: continue
            n = min(len(issued) - 1 - idx, 15)
            out.append(f"s_waitcnt lgkmcnt({n})")
            done = len(issued) - 1 - n
        else:
            if x.startswith("ds_"):
                issued.append(x.split(";@")[1].strip() if ";@" in x else "")
            if x.startswith("s_waitcnt lgkmcnt(0)"): done = len(issued) - 1
            out.append(x.split(";@")[0].rstrip())
    return out

def gen(pol=" nt", stamps=False, tl=False, nomem=False, NK=12, THR=8.0, act=(1, 3, 5), xpol=" sc1", stpol="", drop=(), phase=False, dbg=False):
    L = []
    A = L.append
    ND = 32 - 2 * NK
    NT = NK + ND
    U = 16384
    VB = 3 * U
    QB = 6 * U
    PX = 7 * U
    PXS = 16384 if False else 12288
    LDS = PX + 2 * 12288
    C = (128 ** -0.5) * math.log2(math.e)
    vQ, vK, vV, vS, vX, vPo, vPp, vO, vAK, vAV = 8, 40, 72, 104, 120, 136, 144, 152, 184, 192
    vMC, vLs, vRp, vRl, vMO, vLn, vMT, vT0, vT1, vT2, vT3, vAW, vAR, vRR = 194, 195, 196, 197, 198, 199, 200, 201, 202, 203, 204, 205, 206, 208
    NV = 210
    def r(b, n): return f"v[{b}:{b+n-1}]"
    sC = "s34"
    A("s_cmp_ge_u32 s2, 256")
    A("s_cbranch_scc1 L_end")
    A("s_load_dwordx4 s[4:7], s[0:1], 8")
    A("s_load_dwordx2 s[16:17], s[0:1], 0")
    A("s_load_dwordx2 s[18:19], s[0:1], 24")
    A("s_load_dwordx4 s[40:43], s[0:1], 32")
    if stamps:
        A("s_memrealtime s[44:45]")
        A("s_memtime s[50:51]")
    A("v_lshrrev_b32 v1, 6, v0")
    A("v_and_b32 v2, 63, v0")
    A("s_lshr_b32 s21, s2, 4")
    A("v_readfirstlane_b32 s3, v1")
    A("s_lshl_b32 s21, s21, 3")
    A("s_and_b32 s22, s2, 7")
    A("s_or_b32 s21, s21, s22")
    A("s_bfe_u32 s22, s2, 0x10003")
    A("s_cmp_ge_u32 s3, 4")
    A("s_cbranch_scc1 L_compute")
    if tl: A("v_mov_b32 v20, 0")
    A("s_lshl_b32 s20, s21, 19")
    A("s_lshl_b32 s26, s3, 12")
    A("v_and_b32 v3, 15, v2")
    A("v_lshrrev_b32 v4, 4, v2")
    A("v_lshlrev_b32 v5, 8, v4")
    A("v_xor_b32 v6, v3, v4")
    for j in range(4):
        A(f"v_xor_b32 v7, {4*j}, v6")
        A(f"v_lshl_add_u32 v{8+j}, v7, 4, v5")
    A("s_lshl_b32 s24, s21, 14")
    A("s_mov_b32 s11, 0x20000"); A("s_mov_b32 s15, 0x20000"); A("s_mov_b32 s39, 0x20000"); A("s_mov_b32 s38, 16384")
    A(f"s_add_u32 m0, s26, {QB}")
    A("s_waitcnt lgkmcnt(0)")
    A("s_add_u32 s36, s16, s24"); A("s_addc_u32 s37, s17, 0")
    A("s_add_u32 s8, s4, s20"); A("s_addc_u32 s9, s5, 0")
    for j in range(4):
        A(f"buffer_load_dwordx4 v{8+j}, s[36:39], s26 offen offset:{j*1024} lds")
    A("s_add_u32 s12, s6, s20"); A("s_addc_u32 s13, s7, 0")
    A("v_lshrrev_b32 v4, 3, v2")
    A("v_and_b32 v3, 7, v2")
    A("v_and_b32 v5, 2, v4")
    A("v_lshlrev_b32 v5, 1, v5")
    A("v_xor_b32 v3, v3, v5")
    A("v_lshlrev_b32 v4, 8, v4")
    A("v_lshl_add_u32 v12, v3, 4, v4")
    A("s_lshl_b32 s23, s22, 7")
    A("v_add_u32 v12, s23, v12")
    A("v_add_u32 v13, 1024, v12")
    A("v_xor_b32 v14, 128, v12")
    A("v_add_u32 v15, 1024, v14")
    A("s_lshl_b32 s27, s3, 11")
    A(f"s_add_u32 s27, s27, {VB}")
    A("s_mov_b32 s32, 0")
    A("s_mov_b32 s28, 0")
    A(f"s_mov_b32 s29, {U}")
    A("s_branch L_ld_issue")
    A("L_ld_loop:")
    A("s_waitcnt vmcnt(8)")
    A("s_barrier")
    A("L_ld_issue:")
    if tl: A("s_memrealtime s[46:47]")
    A("s_lshl_b32 s30, s32, 1"); A("s_add_u32 s30, s30, s22"); A(f"s_add_u32 s31, s32, {NK}")
    A(f"s_cmp_lt_u32 s32, {NK}"); A("s_cselect_b32 s30, s30, s31")
    A("s_lshl_b32 s30, s30, 14"); A("s_add_u32 s30, s30, s26")
    A(f"s_cmp_lt_u32 s32, {NT}")
    A("s_cselect_b32 s10, 0x80000, 0" if not nomem else "s_mov_b32 s10, 0")
    A("s_add_u32 m0, s28, s26")
    A("s_sub_u32 s33, s32, 2")
    for j in range(4):
        A(f"buffer_load_dwordx4 v{8+j}, s[8:11], s30 offen offset:{j*1024}{pol} lds")
    A("s_lshl_b32 s30, s33, 1"); A("s_add_u32 s30, s30, s22"); A(f"s_add_u32 s31, s33, {NK}")
    A(f"s_cmp_lt_u32 s33, {NK}"); A("s_cselect_b32 s30, s30, s31")
    A("s_cselect_b32 s35, 0x80000, 0" if not nomem else "s_mov_b32 s35, 0")
    A("s_lshl_b32 s30, s30, 14"); A("s_add_u32 s30, s30, s26")
    A(f"s_cmp_lt_u32 s33, {NT}")
    A("s_cselect_b32 s14, 0x80000, 0" if not nomem else "s_mov_b32 s14, 0")
    A("s_add_u32 m0, s29, s27")
    A(f"s_add_u32 s28, s28, {U}")
    for j in range(2):
        A(f"buffer_load_dwordx4 v{12+j}, s[12:15], s30 offen offset:{j*1024}{pol} lds")
    A("s_add_u32 m0, m0, 8192")
    A("s_mov_b32 s14, s35")
    for j in range(2):
        A(f"buffer_load_dwordx4 v{14+j}, s[12:15], s30 offen offset:{j*1024}{pol} lds")
    A(f"s_cmp_ge_u32 s28, {3*U}"); A("s_cselect_b32 s28, 0, s28")
    A(f"s_add_u32 s29, s29, {U}")
    A(f"s_cmp_ge_u32 s29, {3*U}"); A("s_cselect_b32 s29, 0, s29")
    if tl:
        A("s_waitcnt lgkmcnt(0)"); A("v_mov_b32 v21, s46"); A("v_cmp_eq_u32 vcc, s32, v2"); A("s_nop 1"); A("v_cndmask_b32 v20, v20, v21, vcc")
    A("s_add_u32 s32, s32, 1")
    A("s_cmp_lt_u32 s32, 2")
    A("s_cbranch_scc1 L_ld_issue")
    A(f"s_cmp_lt_u32 s32, {NT+4}")
    A("s_cbranch_scc1 L_ld_loop")
    if tl:
        A("s_cmp_lg_u32 s3, 0"); A("s_cbranch_scc1 L_end")
        A("s_lshl_b32 s16, s2, 8"); A("s_add_u32 s16, s16, 0x8040000")
        A("v_lshl_add_u32 v21, v2, 2, s16")
        A("global_store_dword v21, v20, s[42:43]")
    A("s_waitcnt vmcnt(0)")
    A("s_endpgm")
    A("L_compute:")
    A("s_sub_u32 s3, s3, 4")
    A("s_and_b32 s23, s3, 1")
    A("s_lshr_b32 s24, s3, 1")
    A("s_lshl_b32 s20, s21, 14")
    A("s_lshl_b32 s25, s23, 13")
    A("s_add_u32 s20, s20, s25")
    A("v_and_b32 v3, 31, v2")
    A("v_lshrrev_b32 v4, 5, v2")
    A("v_lshlrev_b32 v5, 8, v3")
    A("v_lshl_add_u32 v6, v4, 4, v5")
    A("s_lshl_b32 s26, s22, 7")
    A("s_add_u32 s20, s20, s26")
    A("s_lshl_b32 s26, s24, 6")
    A("s_add_u32 s20, s20, s26")
    A("v_and_b32 v7, 15, v2")
    A("v_xor_b32 v7, v7, v4")
    A(f"s_add_u32 s25, s25, {QB}")
    A("v_add_u32 v5, s25, v5")
    for m in range(8):
        A(f"v_xor_b32 v1, {2*m}, v7")
        A(f"v_lshl_add_u32 v{vAK+m}, v1, 4, v5")
    A("s_lshl_b32 s26, s24, 13")
    A("s_sub_u32 s27, s26, s25")
    A("v_bfe_u32 v1, v2, 2, 2")
    A("v_lshl_add_u32 v5, v4, 2, v1")
    A("v_lshlrev_b32 v5, 7, v5")
    A("v_bfe_u32 v3, v2, 4, 1")
    A("v_lshl_add_u32 v5, v3, 5, v5")
    A("v_and_b32 v3, 3, v2")
    A("v_lshl_add_u32 v5, v3, 3, v5")
    A("v_lshrrev_b32 v1, 1, v1")
    A("v_xor_b32 v1, s24, v1")
    A("v_lshl_add_u32 v5, v1, 6, v5")
    A("s_lshl_b32 s25, s24, 12")
    A(f"s_add_u32 s25, s25, {VB + 2*U}")
    A(f"v_add_u32 v{vAV}, s25, v5")
    A(f"v_xor_b32 v{vAV+1}, 4096, v{vAV}")
    A(f"s_mul_i32 s25, s3, 3072")
    A(f"s_add_u32 s25, s25, {PX + PXS}")
    A(f"v_lshl_add_u32 v{vAW}, v2, 4, s25")
    A("s_xor_b32 s26, s3, 2")
    A(f"s_mul_i32 s25, s26, 3072")
    A(f"s_add_u32 s25, s25, {PX + PXS}")
    A(f"v_lshl_add_u32 v{vAR}, v2, 4, s25")
    A("v_lshlrev_b32 v7, 4, v2")
    A("v_lshlrev_b32 v1, 3, v2")
    A(f"s_mov_b32 s34, 0x{f32bits(C):08x}")
    A(f"s_mov_b32 s35, 0x{f32bits(1.0/C):08x}")
    A(f"s_mov_b32 s33, 0x{f32bits(THR):08x}")
    for i in range(32): A(f"v_mov_b32 v{vO+i}, 0")
    for i in range(8): A(f"v_mov_b32 v{vPo+i}, 0")
    for v in (vMC, vMO, vMT): A(f"v_mov_b32 v{v}, 0xff800000")
    A(f"v_mov_b32 v{vLs}, 0")
    A("s_mov_b32 s32, 0")
    A(f"s_mov_b32 s28, {U}")
    A(f"s_mov_b32 s29, {2*U}")
    A(f"s_mov_b32 s30, {(-PXS) & 0xffffffff}")
    A(f"s_mov_b32 s48, {U}")
    A(f"s_mov_b32 s49, {(-2*U) & 0xffffffff}")
    pw = [f"ds_write_b128 v{vAW}, {r(vPo,4)}", f"ds_write_b128 v{vAW}, {r(vPo+4,4)} offset:1024", f"ds_write_b64 v{vAW}, {r(vMC,2)} offset:2048"]
    for x in pw: A(x)
    A("s_waitcnt lgkmcnt(0)")
    A("s_add_u32 s12, s18, s20"); A("s_addc_u32 s13, s19, 0"); A(f"s_mov_b32 s14, {8192-192}"); A("s_mov_b32 s15, 0x20000")
    A("s_lshl_b32 s25, s2, 2"); A("s_add_u32 s25, s25, s3"); A("s_lshl_b32 s25, s25, 13")
    A("s_add_u32 s8, s42, s25"); A("s_addc_u32 s9, s43, 0"); A("s_mov_b32 s10, 8192"); A("s_mov_b32 s11, 0x20000")
    A("s_xor_b32 s25, s25, 0x40000")
    A("s_add_u32 s36, s42, s25"); A("s_addc_u32 s37, s43, 0"); A("s_mov_b32 s38, 8192"); A("s_mov_b32 s39, 0x20000")
    A(f"v_add_u32 v{vAW}, s30, v{vAW}")
    def kread(m): return f"ds_read_b128 {r(vK+4*m,4)}, v{vAK+m} ;@k{m}"
    def vread(w, k2, dt, u): return f"ds_read_b64_tr_b16 {r(vV+((w*2+k2)*2+dt)*4+2*u,2)}, v{vAV+w} offset:{dt*8192+k2*2048+u*1024} ;@v{w}{k2}{dt}{u}"
    def qk(m):
        c = "0" if m == 0 else r(vS,16)
        return f"v_mfma_f32_32x32x16_bf16 {r(vS,16)}, {r(vK+4*m,4)}, {r(vQ+4*m,4)}, {c}"
    def pv(w, k2, dt):
        p = (vPo if w == 0 else vPp) + 4*k2
        return f"v_mfma_f32_32x32x16_bf16 {r(vO+16*dt,16)}, {r(vV+((w*2+k2)*2+dt)*4,4)}, {r(p,4)}, {r(vO+16*dt,16)}"
    A("s_barrier")
    for m in range(8): A(f"ds_read_b128 {r(vQ+4*m,4)}, v{vAK+m}")
    for m in range(8): A(f"v_add_u32 v{vAK+m}, s27, v{vAK+m}")
    for m in range(8): A(kread(m).split(";@")[0])
    for m in range(8): A(f"v_add_u32 v{vAK+m}, s48, v{vAK+m}")
    for m in range(8):
        A(f"s_waitcnt lgkmcnt({7-m})"); A(qk(m))
    A("s_nop 3")
    S = lambda i: f"v{vS+i}"
    X = lambda i: f"v{vX+i}"
    rare = []
    def rareB(tag, nO):
        f = [f"L_rb{tag}:", "s_waitcnt lgkmcnt(0)", "s_nop 7",
             f"v_sub_f32 v{vT1}, v{vMO}, v{vT3}", f"v_sub_f32 v{vT2}, v{vMC}, v{vT3}", f"v_sub_f32 v{vRp}, v{vRp}, v{vT3}",
             f"v_exp_f32 v{vT1}, v{vT1}", f"v_exp_f32 v{vT2}, v{vT2}", f"v_exp_f32 v{vRp}, v{vRp}",
             f"v_mov_b32 v{vMC}, v{vT3}", f"v_mov_b32 v{vMO}, v{vT3}",
             f"v_add_f32 v{vMT}, s33, v{vT3}", f"v_mul_f32 v{vMT}, s35, v{vMT}",
             f"v_mul_f32 v{vLs}, v{vT2}, v{vLs}", f"v_mul_f32 v{vRl}, v{vRp}, v{vRl}"]
        f += [f"v_mul_f32 v{vO+i}, v{vT1}, v{vO+i}" for i in range(nO)]
        for base, fac in ((vPo, vT2), (vPp, vRp)):
            for i in range(8):
                f += [f"v_lshlrev_b32 v{vT1}, 16, v{base+i}", f"v_and_b32 v{vT3}, 0xffff0000, v{base+i}",
                      f"v_mul_f32 v{vT1}, v{fac}, v{vT1}", f"v_mul_f32 v{vT3}, v{fac}, v{vT3}",
                      f"v_cvt_pk_bf16_f32 v{base+i}, v{vT1}, v{vT3}"]
        f += ["s_nop 1", "s_setpc_b64 s[52:53]" if tag == "" else f"s_branch L_rbb{tag}"]
        return f
    def rareA(tag):
        return [f"L_ra{tag}:",
             f"v_mov_b32 v{vT1}, v{vT0}", "s_nop 1", f"v_permlane32_swap_b32 v{vT0}, v{vT1}",
             f"v_max_f32 v{vT0}, v{vT0}, v{vT1}", f"v_mul_f32 v{vT0}, {sC}, v{vT0}", f"v_ceil_f32 v{vT0}, v{vT0}",
             f"v_max_f32 v{vT0}, v{vT0}, v{vMC}", f"v_sub_f32 v{vT1}, v{vMC}, v{vT0}", f"v_exp_f32 v{vT1}, v{vT1}",
             f"v_mov_b32 v{vMC}, v{vT0}", f"v_add_f32 v{vMT}, s33, v{vT0}", f"v_mul_f32 v{vMT}, s35, v{vMT}",
             f"v_mul_f32 v{vLs}, v{vT1}, v{vLs}", f"s_branch L_rab{tag}"]
    def bcheck(tag, nO):
        rare.extend(rareB(tag, nO))
        return ["WAIT rl", f"v_max_f32 v{vT3}, v{vRp}, v{vMC}", f"v_cmp_neq_f32 vcc, v{vT3}, v{vMO}", f"s_cbranch_vccnz L_rb{tag}", f"L_rbb{tag}:"]
    xr = [f"ds_read_b64 {r(vRp,2)}, v{vAR} offset:2048 ;@rl", f"ds_read_b128 {r(vPp,4)}, v{vAR} ;@p0", f"ds_read_b128 {r(vPp+4,4)}, v{vAR} offset:1024 ;@p1"]
    def body(tag, dts):
        f = ["s_waitcnt lgkmcnt(0)", "s_barrier"]
        vo = [vread(0, k2, dt, u) for k2 in range(2) for dt in dts for u in range(2)]
        vp = [vread(1, k2, dt, u) for k2 in range(2) for dt in dts for u in range(2)]
        mx = [f"v_max3_f32 v{vT0}, {S(0)}, {S(1)}, {S(2)}", f"v_max3_f32 v{vT1}, {S(3)}, {S(4)}, {S(5)}"]
        for k in range(6, 16, 2): mx.append(f"v_max3_f32 v{vT0+((k//2+1)&1)}, v{vT0+((k//2+1)&1)}, {S(k)}, {S(k+1)}")
        mx.append(f"v_max_f32 v{vT0}, v{vT0}, v{vT1}")
        f += xr + vo[:4]
        f += merge(mx, vo[4:])
        f += bcheck(tag, 16*len(dts))
        if len(dts) == 2: f.append(f"v_add_f32 v{vLn}, v{vLs}, v{vRl}")
        f += [f"v_cmp_gt_f32 vcc, v{vT0}, v{vMT}", f"s_cbranch_vccnz L_ra{tag}", f"L_rab{tag}:"]
        rare.extend(rareA(tag))
        fm = [f"v_fma_f32 {X(i)}, {S(i)}, {sC}, -v{vMC}" for i in range(16)]
        pvo = []
        for k2 in range(2):
            for dt in dts: pvo.append([f"WAIT v0{k2}{dt}1", pv(0, k2, dt)])
        seg = merge(fm, [kread(m) for m in range(8)])
        seg2 = []
        step = len(seg) // len(pvo)
        for i, x in enumerate(seg):
            if i % step == 0 and i // step < len(pvo): seg2 += pvo[i // step]
            seg2.append(x)
        f += seg2
        e = []; pend = []
        for i in range(16):
            e.append(f"v_exp_f32 {X(i)}, {X(i)}")
            e += pend; pend = [f"v_add_f32 v{vLs}, v{vLs}, {X(i)}"]
            if i % 2 == 1: pend.append(f"v_cvt_pk_bf16_f32 v{vPo+i//2}, {X(i-1)}, {X(i)}")
        upd = ["s_add_u32 s31, s28, s48", f"s_cmp_ge_u32 s31, {3*U}", "s_cselect_b32 s31, s49, s48", "s_add_u32 s28, s28, s31"]
        upd += [f"v_add_u32 v{vAK+m}, s31, v{vAK+m}" for m in range(8)]
        e += upd[:1] + pend + pw + upd[1:]
        upd2 = ["s_add_u32 s31, s29, s48", f"s_cmp_ge_u32 s31, {3*U}", "s_cselect_b32 s31, s49, s48", "s_add_u32 s29, s29, s31",
                f"v_add_u32 v{vAV}, s31, v{vAV}", f"v_add_u32 v{vAV+1}, s31, v{vAV+1}",
                f"v_add_u32 v{vAR}, s30, v{vAR}", "s_sub_u32 s30, 0, s30", f"v_add_u32 v{vAW}, s30, v{vAW}"]
        e += upd2
        e = merge(e, vp, 0.35)
        mf = [[f"WAIT k{m}", qk(m)] for m in range(8)]
        for k2 in range(2):
            for dt in dts: mf.append([f"WAIT v1{k2}{dt}1", pv(1, k2, dt)])
        tot = sum(cost(x) for x in e); acc = 0; k = 0
        for x in e:
            while k < len(mf) and acc >= tot * 0.97 * k / len(mf):
                f += mf[k]; k += 1
            f.append(x); acc += cost(x)
        for g in mf[k:]: f += g
        f = fix_lgkm(f)
        if drop: f = [z for z in f if not z.startswith(tuple(drop))]
        return f
    pre = list(L)
    kl = body("K", (0, 1))
    A("L_kloop:")
    nk_iter = NK + 1 if ND > 0 else NK
    kl_end = ["s_add_u32 s32, s32, 1", f"s_cmp_lt_u32 s32, {nk_iter}", "s_cbranch_scc1 L_kloop"]
    L.extend(kl + kl_end)
    send = [f"buffer_store_dwordx4 {r(vO+16+4*i,4)}, v7, s[8:11], 0 offen offset:{1024*i}{xpol}" for i in range(4)]
    send.append(f"v_add_u32 v1, 4096, v1")
    send.append(f"buffer_store_dwordx2 {r(vMO,2)}, v1, s[8:11], 0 offen{xpol}")
    flagset = ["s_cmp_lg_u32 s3, 0", "s_cbranch_scc1 L_nf",
               "s_and_b32 s25, s2, 3", "s_lshl_b32 s25, s25, 3", "s_lshl_b32 s25, 1, s25", "s_and_b32 s26, s2, 0xfc",
               f"v_mov_b32 v{vT1}, s25", f"v_mov_b32 v{vT2}, s26", "s_mov_b64 exec, 1",
               f"global_atomic_or v{vT2}, v{vT1}, s[40:41] sc1", "s_mov_b64 exec, -1", "L_nf:"]
    poll = ["s_xor_b32 s25, s2, 8", f"v_mov_b32 v5, s25", f"global_load_ubyte v3, v5, s[40:41] sc1"]
    chk = ["s_mov_b32 s26, 0", "L_chk:", "s_waitcnt vmcnt(0)", "v_readfirstlane_b32 s25, v3", "s_cmp_lg_u32 s25, 0", "s_cbranch_scc1 L_got",
           "s_add_u32 s26, s26, 1", "s_cmp_gt_u32 s26, 0x40000", "s_cbranch_scc1 L_got",
           "s_sleep 2", f"global_load_ubyte v3, v5, s[40:41] sc1", "s_branch L_chk", "L_got:"]
    chk += [f"buffer_load_dwordx4 {r(vO+16+4*i,4)}, v7, s[36:39], 0 offen offset:{1024*i}{xpol}" for i in range(4)]
    chk.append(f"buffer_load_dwordx2 {r(vRR,2)}, v1, s[36:39], 0 offen{xpol}")
    mid = []
    dl = []
    if ND > 0:
        mid = ["s_nop 7", "s_nop 3"] + send
        L.extend(mid)
        dl = body("D", (0,))
        a0, a1, a2 = act
        assert 1 <= a0 <= a1 < a2 <= ND - 1
        A("L_dloop:")
        dl2 = ["s_waitcnt vmcnt(0)"] if False else []
        L.extend(dl)
        A("s_add_u32 s32, s32, 1")
        for idx, lab in ((a0 - 1, "L_a0"), (a0, "L_a1"), (a1, "L_a2"), (a2, "L_a3")):
            pass
        acts = {}
        def addact(i, code): acts.setdefault(i, []).extend(code)
        addact(a0, ["s_waitcnt vmcnt(0)"])
        addact(a0 + 1, flagset)
        addact(a1 + 1, poll)
        addact(a2 + 1 if a2 + 1 <= ND - 1 else ND - 1, chk)
        assert a1 + 1 < (a2 + 1 if a2 + 1 <= ND - 1 else ND - 1) or True
        for i in sorted(acts):
            if i < ND - 1:
                A(f"s_cmp_eq_u32 s32, {NK + 1 + i}"); A(f"s_cbranch_scc1 L_act{i}")
                rare.extend([f"L_act{i}:"] + acts[i] + ["s_branch L_dloop"])
        A(f"s_cmp_lt_u32 s32, {NT}")
        A("s_cbranch_scc1 L_dloop")
        if ND - 1 in acts: L.extend(acts[ND - 1])
        assert max(acts) <= ND - 1
    dts = (0,) if ND > 0 else (0, 1)
    T = ["s_waitcnt lgkmcnt(0)", "s_barrier"]
    vo = [vread(0, k2, dt, u) for k2 in range(2) for dt in dts for u in range(2)]
    vp = [vread(1, k2, dt, u) for k2 in range(2) for dt in dts for u in range(2)]
    T += xr + vo
    if ND > 0: T += vp
    T += bcheck("F", 16*len(dts))
    mfs = []
    for w in range(2):
        for k2 in range(2):
            for dt in dts: mfs.append([f"WAIT v{w}{k2}{dt}1", pv(w, k2, dt)])
    fin = [f"v_max_f32 v{vT3}, v{vMO}, v{vRR}", f"v_sub_f32 v{vT1}, v{vMO}, v{vT3}", f"v_sub_f32 v{vT2}, v{vRR}, v{vT3}",
           f"v_exp_f32 v{vT1}, v{vT1}", f"v_exp_f32 v{vT2}, v{vT2}", "s_nop 0",
           f"v_mul_f32 v{vT0}, v{vT1}, v{vLn}", f"v_fmac_f32 v{vT0}, v{vT2}, v{vRR+1}",
           f"v_mov_b32 v{vT3}, v{vT0}", "s_nop 1", f"v_permlane32_swap_b32 v{vT0}, v{vT3}", f"v_add_f32 v{vT0}, v{vT0}, v{vT3}",
           f"v_rcp_f32 v{vT0}, v{vT0}", "s_nop 0", f"v_mul_f32 v{vT1}, v{vT0}, v{vT1}", f"v_mul_f32 v{vT2}, v{vT0}, v{vT2}"]
    fin += [f"v_mul_f32 v{vO+16+i}, v{vT2}, v{vO+16+i}" for i in range(16)]
    T.append(f"v_add_f32 v{vLn}, v{vLs}, v{vRl}")
    if ND > 0:
        T += mfs[0] + mfs[1] + ["s_waitcnt vmcnt(0)"] + fin[:8] + mfs[2] + fin[8:16] + mfs[3] + fin[16:]
    else:
        for g in mfs[:4]: T += g
        T += vp
        for g in mfs[4:]: T += g
        T += ["s_nop 7", "s_nop 3"] + send + ["s_waitcnt vmcnt(0)", "s_barrier"] + flagset + poll + chk + ["s_waitcnt vmcnt(0)"] + fin
    for g2 in range(2):
        b = vO + 8*g2; d = vS + 4*g2
        for i in range(8): T.append(f"v_fma_f32 v{b+i}, v{b+i}, v{vT1}, v{b+16+i}")
        for i in range(4): T.append(f"v_cvt_pk_bf16_f32 v{d+i}, v{b+2*i}, v{b+2*i+1}")
        T.append("s_nop 1")
        T.append(f"v_permlane32_swap_b32 v{d}, v{d+2}")
        T.append(f"v_permlane32_swap_b32 v{d+1}, v{d+3}")
        T.append(f"buffer_store_dwordx4 {r(d,4)}, v6, s[12:15], 0 offen offset:{g2*32}{stpol}")
    T = fix_lgkm(T)
    L.extend(T)
    errs = hazard.check(pre[pre.index("L_compute:"):] + kl + kl_end + kl + kl_end + mid + dl + ["s_add_u32 s32, s32, 1", "s_cmp_lt_u32 s32, 1", "s_cbranch_scc1 x"] + dl + ["s_add_u32 s32, s32, 1", "s_cmp_lt_u32 s32, 1", "s_cbranch_scc1 x"] + T, "compute") \
        + hazard.check(pre[:pre.index("L_compute:")], "loader") + hazard.check(rare, "rare")
    if not drop:
        for e in errs: print("HAZARD", e)
    if stamps:
        A("s_waitcnt vmcnt(0)")
        A("s_memrealtime s[46:47]")
        A("s_memtime s[52:53]")
        A("s_cmp_lg_u32 s3, 2"); A("s_cbranch_scc1 L_end")
        A("s_waitcnt lgkmcnt(0)")
        A("v_mov_b32 v8, s44"); A("v_mov_b32 v9, s45"); A("v_mov_b32 v10, s46"); A("v_mov_b32 v11, s47")
        A("s_lshl_b32 s16, s2, 4"); A("s_add_u32 s16, s16, 0x8000000")
        A("v_mov_b32 v12, s16")
        A("s_mov_b64 exec, 1")
        A("global_store_dwordx4 v12, v[8:11], s[42:43]")
        A("v_mov_b32 v16, s50"); A("v_mov_b32 v17, s51"); A("v_mov_b32 v18, s52"); A("v_mov_b32 v19, s53")
        A("v_add_u32 v12, 0x10000, v12")
        A("global_store_dwordx4 v12, v[16:19], s[42:43]")
    A("L_end:")
    A("s_endpgm")
    L.extend(rare)
    body_ = "\n".join("    " + x if not x.endswith(":") else x for x in L)
    return wrap(body_, 256, 512, LDS, vgpr=NV, sgpr=64), LDS

if __name__ == "__main__":
    vs = {"v4k16": dict(NK=16), "v4k12": dict(NK=12, act=(1, 3, 5)), "v4k13": dict(NK=13, act=(1, 2, 4))}
    for name, kw in vs.items():
        asm, lds = gen(**kw)
        open(f"{name}.s", "w").write(asm)
        build(asm, f"{name}.co")
        asm, lds = gen(stamps=True, tl=True, **kw)
        build(asm, f"{name}_t.co")
        print(name, lds)
```

```python
import sys, struct, math
from asmlib import *
import hazard
from gen4 import f32bits, cost, merge, fix_lgkm

def weave(e, mf, frac=1.0, start=0.0):
    f = []
    tot = sum(cost(x) for x in e); acc = 0; k = 0
    for x in e:
        while k < len(mf) and acc >= tot * (start + (frac - start) * k / len(mf)) and not x.endswith(":"):
            f += mf[k]; k += 1
        f.append(x); acc += cost(x)
    for g in mf[k:]: f += g
    return f

def gen(pol=" nt", stamps=False, tl=False, nomem=False, THR=8.0, stpol="", drop=(), WK=12, WD=15, G=2, NK=16, DL=2, xpol=" sc1", spol=None, touch=False, phase=False):
    if spol is None: spol = xpol
    L = []
    A = L.append
    ND = 32 - 2 * NK
    NT = NK + ND
    U = 16384
    VB = 4 * U
    QB = VB + 2 * U
    PX = 8 * U
    PXS = 12288
    LDS = PX + 2 * PXS
    C = (128 ** -0.5) * math.log2(math.e)
    vQ, vK, vV, vS, vPo, vPp, vO, vC, vAK, vAV = 8, 40, 72, 104, 136, 144, 152, 184, 200, 208
    vMC, vLs, vRp, vRl, vT0, vT1, vT2, vT3, vAW, vAR = 210, 211, 212, 213, 214, 215, 216, 217, 218, 219
    vMO, vLn, vN = 220, 221, 222
    vRR = 228
    NV = 232
    def r(b, n): return f"v[{b}:{b+n-1}]"
    sC = "s34"
    A("s_cmp_ge_u32 s2, 256")
    A("s_cbranch_scc1 L_end")
    A("s_load_dwordx4 s[4:7], s[0:1], 8")
    A("s_load_dwordx2 s[16:17], s[0:1], 0")
    A("s_load_dwordx2 s[18:19], s[0:1], 24")
    A("s_load_dwordx4 s[40:43], s[0:1], 32")
    A("s_memrealtime s[44:45]")
    if stamps:
        A("s_memtime s[50:51]")
    A("v_lshrrev_b32 v1, 6, v0")
    A("v_and_b32 v2, 63, v0")
    A("s_lshr_b32 s21, s2, 4")
    A("v_readfirstlane_b32 s3, v1")
    A("s_lshl_b32 s21, s21, 3")
    A("s_and_b32 s22, s2, 7")
    A("s_or_b32 s21, s21, s22")
    A("s_bfe_u32 s22, s2, 0x10003")
    A("s_cmp_ge_u32 s3, 4")
    A("s_cbranch_scc1 L_compute")
    if tl: A("v_mov_b32 v20, 0")
    A("s_lshl_b32 s20, s21, 19")
    A("s_lshl_b32 s26, s3, 12")
    A("v_and_b32 v3, 15, v2")
    A("v_lshrrev_b32 v4, 4, v2")
    A("v_lshlrev_b32 v5, 8, v4")
    A("v_xor_b32 v6, v3, v4")
    for j in range(4):
        A(f"v_xor_b32 v7, {4*j}, v6")
        A(f"v_lshl_add_u32 v{8+j}, v7, 4, v5")
    A("s_lshl_b32 s24, s21, 14")
    A("s_add_u32 s20, s20, s26")
    A("s_add_u32 s24, s24, s26")
    A("s_lshl_b32 s29, s22, 14")
    A("s_mov_b32 s11, 0x20000"); A("s_mov_b32 s15, 0x20000"); A("s_mov_b32 s39, 0x20000"); A("s_mov_b32 s38, 4096")
    A(f"s_sub_u32 s10, 0x80000, s26" if not nomem else "s_mov_b32 s10, 0")
    A("s_mov_b32 s14, 0")
    A(f"s_add_u32 m0, s26, {QB}")
    A("s_waitcnt lgkmcnt(0)")
    A("s_add_u32 s36, s16, s24"); A("s_addc_u32 s37, s17, 0")
    A("s_add_u32 s8, s4, s20"); A("s_addc_u32 s9, s5, 0")
    loads = []
    def soff(reg, j):
        if j < 0: return f"s_mov_b32 {reg}, 0"
        if j < NK: return f"s_add_u32 {reg}, s29, {2*j*U}"
        return f"s_mov_b32 {reg}, {(NK + j)*U}"
    def unitK(j):
        fb = j - 4 if j >= 4 else -99
        for i in range(4):
            pre = [f"s_add_u32 m0, s26, {(j % 4) * U}", soff("s30", j)] if i == 0 else []
            loads.append((pre, f"buffer_load_dwordx4 v{8+i}, s[8:11], s30 offen offset:{i*1024}{pol} lds", fb, f"K{j}", WK if j < NK else WD))
    def unitV(j):
        fb = j - 2 if j >= 3 else (-1 if j == 2 else -99)
        for i in range(4 if j < NK else 2):
            pre = []
            if i == 0: pre = [f"s_add_u32 m0, s27, {(j % 4) * U}", soff("s31", j)]
            if i == 2: pre = [f"s_add_u32 m0, s27, {(j % 4) * U + 8192}", "s_nop 0"]
            if i == 0 and j == 0: pre.append("s_mov_b32 s14, s10")
            loads.append((pre, f"buffer_load_dwordx4 v{12+i}, s[12:15], s31 offen offset:{(i%2)*1024}{pol} lds", fb, f"V{j}", WK + 4 if j < 0 else WK if j < NK else WD))
    for i in range(4):
        loads.append(([], f"buffer_load_dwordx4 v{8+i}, s[36:39], 0 offen offset:{i*1024} lds", -99, "Q", WK))
    vsetup = ["s_add_u32 s12, s6, s20", "s_addc_u32 s13, s7, 0",
              "v_lshrrev_b32 v4, 3, v2", "v_and_b32 v3, 7, v2", "v_and_b32 v5, 2, v4", "v_lshlrev_b32 v5, 1, v5", "v_xor_b32 v3, v3, v5",
              "v_lshlrev_b32 v4, 8, v4", "v_lshl_add_u32 v12, v3, 4, v4", "s_lshl_b32 s23, s22, 7", "v_add_u32 v12, s23, v12", "v_add_u32 v13, 1024, v12",
              "v_xor_b32 v14, 128, v12", "v_add_u32 v15, 1024, v14",
              "s_lshl_b32 s27, s3, 11", f"s_add_u32 s27, s27, {VB}"]
    unitK(0)
    for s in range(0, NT + 1):
        if s + 1 < NT: unitK(s + 1)
        n0 = len(loads)
        unitV(s - 1)
        if s == 0:
            x = loads[n0]; loads[n0] = (vsetup + x[0],) + x[1:]
    last = {}
    for i, x in enumerate(loads): last[x[3]] = i
    bars = [(-2, last["Q"]), (-1, last["K0"])]
    for s in range(0, NT + 1):
        bars.append((s, max(last.get(f"K{s+1}", -1), last[f"V{s-1}"])))
    zi = [i for i, x in enumerate(loads) if x[3] == "V-1"]
    i = 0; bi = 0; done = -1; passed = -98; nb = 0
    n = len(loads)
    while bi < len(bars):
        b, cb = bars[bi]
        g = min(G, n - i)
        can_issue = g > 0 and all(loads[k][2] <= passed for k in range(i, i + g))
        if g > 0:
            W = loads[i][4]
            ci = i + g - 1 - W
            if ci <= zi[-1] and i > zi[-1]: ci -= min(len(zi), zi[-1] - ci + 1) if ci >= zi[0] - len(zi) else 0
        if can_issue and (ci < cb or cb >= i):
            if ci > done:
                A(f"s_waitcnt vmcnt({i - 1 - ci})"); done = ci
            for k in range(i, i + g):
                for z in loads[k][0]: A(z)
                A(loads[k][1])
            i += g
        else:
            assert cb < i
            if cb > done:
                A(f"s_waitcnt vmcnt({i - 1 - cb})"); done = cb
            A("s_barrier")
            if tl:
                A("s_memrealtime s[46:47]"); A("s_waitcnt lgkmcnt(0)"); A(f"v_writelane_b32 v20, s46, {nb}")
            nb += 1
            passed = b; bi += 1
    assert i == n
    if tl:
        A("s_cmp_lg_u32 s3, 0"); A("s_cbranch_scc1 L_end")
        A("s_lshl_b32 s16, s2, 8"); A("s_add_u32 s16, s16, 0x8040000")
        A("v_lshl_add_u32 v21, v2, 2, s16")
        A("global_store_dword v21, v20, s[42:43]")
    A("s_endpgm")
    A("L_compute:")
    A("s_sub_u32 s3, s3, 4")
    A("s_and_b32 s23, s3, 1")
    A("s_lshr_b32 s24, s3, 1")
    A("s_lshl_b32 s20, s21, 14")
    A("s_lshl_b32 s25, s23, 13")
    A("s_add_u32 s20, s20, s25")
    A("v_and_b32 v3, 31, v2")
    A("v_lshrrev_b32 v4, 5, v2")
    A("v_lshlrev_b32 v5, 8, v3")
    A("v_lshl_add_u32 v6, v4, 4, v5")
    A("s_lshl_b32 s26, s22, 7")
    A("s_add_u32 s20, s20, s26")
    A("s_lshl_b32 s26, s24, 6")
    A("s_add_u32 s20, s20, s26")
    A("v_and_b32 v7, 15, v2")
    A("v_xor_b32 v7, v7, v4")
    A(f"s_add_u32 s25, s25, {QB}")
    A("v_add_u32 v5, s25, v5")
    for m in range(8):
        A(f"v_xor_b32 v1, {2*m}, v7")
        A(f"v_lshl_add_u32 v{vAK+m}, v1, 4, v5")
    A("s_lshl_b32 s26, s24, 13")
    A("s_sub_u32 s27, s26, s25")
    A("v_bfe_u32 v1, v2, 2, 2")
    A("v_lshl_add_u32 v5, v4, 2, v1")
    A("v_lshlrev_b32 v5, 7, v5")
    A("v_bfe_u32 v3, v2, 4, 1")
    A("v_lshl_add_u32 v5, v3, 5, v5")
    A("v_and_b32 v3, 3, v2")
    A("v_lshl_add_u32 v5, v3, 3, v5")
    A("v_lshrrev_b32 v1, 1, v1")
    A("v_xor_b32 v1, s24, v1")
    A("v_lshl_add_u32 v5, v1, 6, v5")
    A("s_lshl_b32 s25, s24, 12")
    A(f"s_add_u32 s25, s25, {VB}")
    A(f"v_add_u32 v{vAV}, s25, v5")
    A(f"v_xor_b32 v{vAV+1}, 4096, v{vAV}")
    A(f"s_mul_i32 s25, s3, 3072")
    A(f"s_add_u32 s25, s25, {PX}")
    A(f"v_lshl_add_u32 v{vAW}, v2, 4, s25")
    A("s_xor_b32 s26, s3, 2")
    A(f"s_mul_i32 s25, s26, 3072")
    A(f"s_add_u32 s25, s25, {PX}")
    A(f"v_lshl_add_u32 v{vAR}, v2, 4, s25")
    A("v_lshlrev_b32 v7, 4, v2")
    A("v_add_u32 v1, 4096, v7")
    A(f"s_mov_b32 s34, 0x{f32bits(C):08x}")
    A(f"s_mov_b32 s33, 0x{f32bits(THR):08x}")
    A("s_mov_b32 s35, 0x3f803f80")
    A("s_movk_i32 s31, 0xff")
    for i in range(32): A(f"v_mov_b32 v{vO+i}, 0")
    for i in range(8): A(f"v_mov_b32 v{vPo+i}, 0")
    A(f"v_mov_b32 v{vLs}, 0")
    A(f"v_mov_b32 v{vMO}, 0xff800000")
    A("s_mov_b32 s32, 0")
    if phase:
        A("s_mov_b32 s60, 0"); A("s_mov_b32 s61, 0")
    A("s_lshl_b32 s25, s21, 1"); A("s_and_b32 s25, s25, 0xfc")
    A("v_mov_b32 v5, s25")
    A("s_waitcnt lgkmcnt(0)")
    A("s_add_u32 s12, s18, s20"); A("s_addc_u32 s13, s19, 0"); A(f"s_mov_b32 s14, {8192-192}"); A("s_mov_b32 s15, 0x20000")
    A("s_lshl_b32 s25, s2, 2"); A("s_add_u32 s25, s25, s3"); A("s_lshl_b32 s25, s25, 13")
    A("s_add_u32 s8, s42, s25"); A("s_addc_u32 s9, s43, 0"); A("s_mov_b32 s10, 8192"); A("s_mov_b32 s11, 0x20000")
    A("s_xor_b32 s25, s25, 0x40000")
    A("s_add_u32 s36, s42, s25"); A("s_addc_u32 s37, s43, 0"); A("s_mov_b32 s38, 8192"); A("s_mov_b32 s39, 0x20000")
    if touch:
        A(f"buffer_load_dword v{vRR}, v1, s[8:11], 0 offen offset:2048 sc1")
        A(f"buffer_load_dword v{vRR+1}, v6, s[12:15], 0 offen sc1")
    A("s_cmp_lg_u32 s3, 0"); A("s_cbranch_scc1 L_notag")
    A("s_or_b32 s25, s44, 1")
    A(f"v_mov_b32 v{vT0}, s25"); A(f"v_mov_b32 v{vT1}, 0")
    A("s_mov_b64 exec, 1")
    A(f"global_atomic_cmpswap v5, {r(vT0,2)}, s[40:41] sc1")
    A("s_mov_b64 exec, -1")
    A("L_notag:")
    def pw(j):
        o = (j % 2) * PXS
        return [f"ds_write_b128 v{vAW}, {r(vPo,4)} offset:{o}", f"ds_write_b128 v{vAW}, {r(vPo+4,4)} offset:{o+1024}", f"ds_write_b64 v{vAW}, {r(vMC,2)} offset:{o+2048}"]
    def xr(j):
        o = (j % 2) * PXS
        return [f"ds_read_b64 {r(vRp,2)}, v{vAR} offset:{o+2048} ;@rl", f"ds_read_b128 {r(vPp,4)}, v{vAR} offset:{o} ;@p0", f"ds_read_b128 {r(vPp+4,4)}, v{vAR} offset:{o+1024} ;@p1"]
    def kread(j, m): return f"ds_read_b128 {r(vK+4*m,4)}, v{vAK+m} offset:{(j%4)*U} ;@k{m}"
    def vread(j, w, k2, dt, u): return f"ds_read_b64_tr_b16 {r(vV+((w*2+k2)*2+dt)*4+2*u,2)}, v{vAV+w} offset:{(j%4)*U+dt*8192+k2*2048+u*1024} ;@v{w}{k2}{dt}{u}"
    def SB(j): return vS + 16 * (j % 2)
    def qk(j, m, first=False):
        c = ("0" if first else r(vC,16)) if m == 0 else r(SB(j),16)
        return f"v_mfma_f32_32x32x16_bf16 {r(SB(j),16)}, {r(vK+4*m,4)}, {r(vQ+4*m,4)}, {c}"
    def pv(w, k2, dt):
        p = (vPo if w == 0 else vPp) + 4*k2
        return f"v_mfma_f32_32x32x16_bf16 {r(vO+16*dt,16)}, {r(vV+((w*2+k2)*2+dt)*4,4)}, {r(p,4)}, {r(vO+16*dt,16)}"
    def mx(j):
        S = lambda i: f"v{SB(j)+i}"
        m = [f"v_max3_f32 v{vT0}, {S(0)}, {S(1)}, {S(2)}", f"v_max3_f32 v{vT1}, {S(3)}, {S(4)}, {S(5)}"]
        for k in range(6, 16, 2): m.append(f"v_max3_f32 v{vT0+((k//2+1)&1)}, v{vT0+((k//2+1)&1)}, {S(k)}, {S(k+1)}")
        m.append(f"v_max_f32 v{vT0}, v{vT0}, v{vT1}")
        return m
    A("s_barrier")
    for m in range(8): A(f"ds_read_b128 {r(vQ+4*m,4)}, v{vAK+m}")
    for m in range(8): A(f"v_add_u32 v{vAK+m}, s27, v{vAK+m}")
    A("s_waitcnt lgkmcnt(0)")
    A("s_barrier")
    for m in range(8): A(kread(0, m).split(";@")[0])
    for i in range(32):
        t = vS + 16 + 2*(i % 4)
        A(f"v_lshlrev_b32 v{t}, 16, v{vQ+i}"); A(f"v_and_b32 v{t+1}, 0xffff0000, v{vQ+i}")
        A(f"v_mul_f32 v{t}, {sC}, v{t}"); A(f"v_mul_f32 v{t+1}, {sC}, v{t+1}")
        A(f"v_cvt_pk_bf16_f32 v{vQ+i}, v{t}, v{t+1}")
        if i % 4 == 0 and i > 0:
            if i == 4: A("s_waitcnt lgkmcnt(0)")
            A(qk(0, i // 4 - 1, True))
    A("s_nop 1")
    A(qk(0, 7, True))
    A("s_nop 7"); A("s_nop 3")
    for x in mx(0): A(x)
    A(f"v_mov_b32 v{vT1}, v{vT0}"); A("s_nop 1"); A(f"v_permlane32_swap_b32 v{vT0}, v{vT1}")
    A(f"v_max_f32 v{vT0}, v{vT0}, v{vT1}"); A(f"v_ceil_f32 v{vMC}, v{vT0}")
    for x in pw(-1): A(x)
    for i in range(16): A(f"v_sub_f32 v{vS+i}, v{vS+i}, v{vMC}")
    if phase: A("s_memtime s[54:55]")
    rare = []
    def rareB(tag, j, nO, final=False, first=False):
        S = lambda i: f"v{SB(j)+i}"
        o = ((j - 1) % 2) * PXS
        f = [f"L_rb{tag}:", "s_nop 7",
             f"v_sub_f32 v{vT1}, v{vMO}, v{vT3}", f"v_sub_f32 v{vT2}, v{vMC}, v{vT3}", f"v_sub_f32 v{vRp}, v{vRp}, v{vT3}"]
        if not final:
            f += [f"v_add_f32 {S(i)}, {S(i)}, v{vT2}" for i in range(16)]
            f += [f"v_add_f32 v{vT0}, v{vT0}, v{vT2}"]
            f += [f"v_sub_f32 v{vC+i}, 0, v{vT3}" for i in range(16)]
        f += [f"v_exp_f32 v{vT1}, v{vT1}", f"v_exp_f32 v{vT2}, v{vT2}", f"v_exp_f32 v{vRp}, v{vRp}",
             f"v_mov_b32 v{vMC}, v{vT3}", f"v_mov_b32 v{vMO}, v{vT3}"]
        if first:
            f += ["s_cmp_eq_u32 s32, 0", f"s_cbranch_scc1 L_rbb{tag}"]
        f += [f"v_mul_f32 v{vLs}, v{vT2}, v{vLs}", f"v_mul_f32 v{vRl}, v{vRp}, v{vRl}"]
        f += [f"v_mul_f32 v{vO+i}, v{vT1}, v{vO+i}" for i in range(nO)]
        f += ["s_waitcnt lgkmcnt(0)"]
        for base, fac in ((vPo, vT2), (vPp, vRp)):
            for i in range(8):
                f += [f"v_lshlrev_b32 v{vT1}, 16, v{base+i}", f"v_and_b32 v{vT3}, 0xffff0000, v{base+i}",
                      f"v_mul_f32 v{vT1}, v{fac}, v{vT1}", f"v_mul_f32 v{vT3}, v{fac}, v{vT3}",
                      f"v_cvt_pk_bf16_f32 v{base+i}, v{vT1}, v{vT3}"]
        f += ["s_nop 1", f"s_branch L_rbb{tag}"]
        return f
    def rareA(tag, j):
        S = lambda i: f"v{SB(j)+i}"
        f = [f"L_ra{tag}:",
             f"v_mov_b32 v{vT1}, v{vT0}", "s_nop 1", f"v_permlane32_swap_b32 v{vT0}, v{vT1}",
             f"v_max3_f32 v{vT0}, v{vT0}, v{vT1}, 0", f"v_ceil_f32 v{vT0}, v{vT0}",
             f"v_sub_f32 v{vT1}, 0, v{vT0}", f"v_exp_f32 v{vT1}, v{vT1}",
             f"v_add_f32 v{vMC}, v{vMC}, v{vT0}"]
        f += [f"v_sub_f32 {S(i)}, {S(i)}, v{vT0}" for i in range(16)]
        f += [f"v_sub_f32 v{vC+i}, 0, v{vMC}" for i in range(16)]
        f += [f"v_mul_f32 v{vLs}, v{vT1}, v{vLs}", "s_nop 2", f"s_branch L_rab{tag}"]
        return f
    def bcheck(tag, j, nO, final=False, first=False):
        rare.extend(rareB(tag, j, nO, final, first))
        return ["WAIT rl", f"v_max_f32 v{vT3}, v{vRp}, v{vMC}", f"v_cmp_neq_f32 vcc, v{vT3}, v{vMO}", f"s_cbranch_vccnz L_rb{tag}", f"L_rbb{tag}:"]
    def body(tag, j, dts, hasqk=True, snap=False, first=False):
        S = lambda i: f"v{SB(j)+i}"
        f = ["s_waitcnt lgkmcnt(0)", "s_barrier"]
        if phase:
            f = ["s_memtime s[56:57]", "s_waitcnt lgkmcnt(0)", "s_sub_u32 s58, s56, s54", f"s_add_u32 s{60 if len(dts)==2 else 61}, s{60 if len(dts)==2 else 61}, s58", "s_barrier", "s_memtime s[54:55]", "s_waitcnt lgkmcnt(0)"]
        x = xr(j-1)
        vo = [vread(j-1, 0, k2, dt, u) for k2 in range(2) for dt in dts for u in range(2)]
        vp = [vread(j-1, 1, k2, dt, u) for k2 in range(2) for dt in dts for u in range(2)]
        kr = [kread(j+1, m) for m in range(8)] if hasqk else []
        f += x + kr[:4]
        f += merge(mx(j), kr[4:] if hasqk else vo[:4])
        if not hasqk: vo = vo[4:]
        f += bcheck(tag, j, 16*len(dts), first=first)
        if snap: f.append(f"v_add_f32 v{vLn}, v{vLs}, v{vRl}")
        f += [f"v_cmp_lt_f32 vcc, s33, v{vT0}", f"s_cbranch_vccnz L_ra{tag}", f"L_rab{tag}:"]
        rare.extend(rareA(tag, j))
        ex = [f"v_exp_f32 {S(i)}, {S(i)}" for i in range(16)]
        cv = [f"v_cvt_pk_bf16_f32 v{vPo+i}, {S(2*i)}, {S(2*i+1)}" for i in range(8)]
        w = pw(j)
        d = [f"v_dot2c_f32_bf16 v{vLs}, s35, v{vPo+i}" for i in range(8)]
        e1 = merge(ex, vo + vp, 0.9)
        e2 = cv[:4] + [w[0]] + cv[4:] + [w[1]] + d + ["s_nop 2", w[2]]
        q = [[f"WAIT k{m}", qk(j+1, m)] for m in range(8)] if hasqk else []
        po = [[f"WAIT v0{k2}{dt}1", pv(0, k2, dt)] for k2 in range(2) for dt in dts]
        pp = [[f"WAIT v1{k2}{dt}1", pv(1, k2, dt)] for k2 in range(2) for dt in dts]
        nq1 = 3 if hasqk else 0
        f += weave(e1, q[:nq1] + po, 1.0, 0.0 if hasqk else 0.1)
        f += weave(e2, q[nq1:], 1.0)
        for g in pp: f += g
        f = fix_lgkm(f)
        if drop: f = [z for z in f if not z.startswith(tuple(drop))]
        return f
    pre = list(L)
    nkit = NK + 1 if ND > 0 else NK
    nloop = (nkit - 2) // 4
    A("L_loop:")
    lp = []
    for j in range(4): lp += body(f"K{j}", j, (0, 1), first=(j == 0))
    lp += ["s_add_u32 s32, s32, 1", f"s_cmp_lt_u32 s32, {nloop}", "s_cbranch_scc1 L_loop"]
    L.extend(lp)
    T = []
    tagload = [f"global_load_dword v{vN}, v5, s[40:41] sc1"]
    tagprep = ["s_waitcnt vmcnt(0)", f"v_mov_b32 v{vN+1}, v{vN}", f"v_lshrrev_b32 v{vN+2}, 8, v{vN}", f"v_lshrrev_b32 v{vN+3}, 16, v{vN}", f"v_lshrrev_b32 v{vN+4}, 24, v{vN}"]
    tv = lambda i: vN + 1 + (i % 4)
    send = []
    for g in range(4):
        send += [f"v_bfi_b32 v{vO+16+4*g+i}, s31, v{tv(i)}, v{vO+16+4*g+i}" for i in range(4)]
        send.append(f"buffer_store_dwordx4 {r(vO+16+4*g,4)}, v7, s[8:11], 0 offen offset:{1024*g}{spol}")
    send.append(f"buffer_store_dwordx4 {r(vMO,4)}, v1, s[8:11], 0 offen{spol}")
    vR = vK if ND == 0 else vO + 16
    recv = [f"buffer_load_dwordx4 {r(vR+4*g,4)}, v7, s[36:39], 0 offen offset:{1024*g}{xpol}" for g in range(4)]
    recv.append(f"buffer_load_dwordx4 {r(vRR,4)}, v1, s[36:39], 0 offen{xpol}")
    check = ["s_mov_b32 s26, 0", "L_chk:", "s_waitcnt vmcnt(0)", f"v_xor_b32 v{vT2}, v{vR}, v{tv(0)}"]
    check += [f"v_bitop3_b32 v{vT2}, v{vT2}, v{vR+i}, v{tv(i)} bitop3:0xf6" for i in range(1, 16)]
    check += [f"v_and_b32 v{vT2}, s31, v{vT2}", f"v_bitop3_b32 v{vT2}, v{vT2}, v{vRR+2}, v{vN} bitop3:0xf6",
              f"v_cmp_ne_u32 vcc, 0, v{vT2}", "s_cbranch_vccnz L_retry", "L_got:"]
    rare.extend(["L_retry:", "s_add_u32 s26, s26, 1", "s_cmp_gt_u32 s26, 0x40000", "s_cbranch_scc1 L_got"] + recv + ["s_branch L_chk"])
    for j in range(4 * nloop, NT):
        isK = j < nkit
        if j == 4 * nloop: T.append("s_waitcnt vmcnt(0)")
        T += body(f"S{j}", j, (0, 1) if isK else (0,), hasqk=(j + 1 < NT), snap=(ND > 0 and j == NK))
        if j == 4 * nloop: T += tagload
        if ND > 0 and j == NK:
            T += tagprep + ["s_nop 6"] + send
        if ND > 0 and j == NK + DL:
            T += ["s_waitcnt vmcnt(0)"] + recv
    assert ND == 0 or NK + DL <= NT - 1
    dts = (0,) if ND > 0 else (1, 0)
    F = []
    if ND > 0: F += check
    else: F += tagprep
    F += ["s_waitcnt lgkmcnt(0)", "s_barrier"]
    rd = [vread(NT-1, w, k2, dt, u) for dt in dts for w in range(2) for k2 in range(2) for u in range(2)]
    F += xr(NT-1) + rd[:8]
    F += bcheck("F", NT, 16*len(dts), final=True)
    F.append(f"v_add_f32 v{vLn}, v{vLs}, v{vRl}")
    mfs = [[f"WAIT v{w}{k2}{dt}1", pv(w, k2, dt)] for dt in dts for w in range(2) for k2 in range(2)]
    fin = [f"v_max_f32 v{vT3}, v{vMO}, v{vRR}", f"v_sub_f32 v{vT1}, v{vMO}, v{vT3}", f"v_sub_f32 v{vT2}, v{vRR}, v{vT3}",
           f"v_exp_f32 v{vT1}, v{vT1}", f"v_exp_f32 v{vT2}, v{vT2}", "s_nop 0",
           f"v_mul_f32 v{vT0}, v{vT1}, v{vLn}", f"v_fmac_f32 v{vT0}, v{vT2}, v{vRR+1}",
           f"v_mov_b32 v{vT3}, v{vT0}", "s_nop 1", f"v_permlane32_swap_b32 v{vT0}, v{vT3}", f"v_add_f32 v{vT0}, v{vT0}, v{vT3}",
           f"v_rcp_f32 v{vT0}, v{vT0}", "s_nop 0", f"v_mul_f32 v{vT1}, v{vT0}, v{vT1}", f"v_mul_f32 v{vT2}, v{vT0}, v{vT2}"]
    fin += [f"v_mul_f32 v{vR+i}, v{vT2}, v{vR+i}" for i in range(16)]
    if ND > 0:
        F += mfs[0] + mfs[1] + fin[:8] + mfs[2] + fin[8:16] + mfs[3] + fin[16:]
    else:
        F += mfs[0] + rd[8:12] + mfs[1] + rd[12:] + mfs[2] + mfs[3]
        for g in mfs[4:]: F += g
        F += ["s_nop 3"] + send + recv + check + fin
    for g2 in range(2):
        b = vO + 8*g2; d = vS + 4*g2
        for i in range(8): F.append(f"v_fma_f32 v{b+i}, v{b+i}, v{vT1}, v{vR+8*g2+i}")
        for i in range(4): F.append(f"v_cvt_pk_bf16_f32 v{d+i}, v{b+2*i}, v{b+2*i+1}")
        F.append("s_nop 1")
        F.append(f"v_permlane32_swap_b32 v{d}, v{d+2}")
        F.append(f"v_permlane32_swap_b32 v{d+1}, v{d+3}")
        F.append(f"buffer_store_dwordx4 {r(d,4)}, v6, s[12:15], 0 offen offset:{g2*32}{stpol}")
    F = fix_lgkm(F)
    L.extend(T + F)
    errs = hazard.check(pre[pre.index("L_compute:"):] + lp + lp + T + F, "compute") + hazard.check(pre[:pre.index("L_compute:")], "loader") + hazard.check(rare, "rare")
    if not drop:
        for e in sorted(set(errs)): print("HAZARD", e)
    if stamps:
        A("s_waitcnt vmcnt(0)")
        A("s_memrealtime s[46:47]")
        A("s_memtime s[52:53]")
        A("s_cmp_lg_u32 s3, 2"); A("s_cbranch_scc1 L_end")
        A("s_waitcnt lgkmcnt(0)")
        A("v_mov_b32 v8, s44"); A("v_mov_b32 v9, s45"); A("v_mov_b32 v10, s46"); A("v_mov_b32 v11, s47")
        A("s_lshl_b32 s16, s2, 4"); A("s_add_u32 s16, s16, 0x8000000")
        A("v_mov_b32 v12, s16")
        A("s_mov_b64 exec, 1")
        A("global_store_dwordx4 v12, v[8:11], s[42:43]")
        A("v_mov_b32 v16, s50"); A("v_mov_b32 v17, s51"); A("v_mov_b32 v18, s52"); A("v_mov_b32 v19, s53")
        A("v_add_u32 v12, 0x10000, v12")
        A("global_store_dwordx4 v12, v[16:19], s[42:43]")
        A("v_mov_b32 v16, s26"); A("v_add_u32 v12, 0x10000, v12")
        if phase:
            A("v_mov_b32 v17, s60"); A("v_mov_b32 v18, s61")
        A("global_store_dwordx4 v12, v[16:19], s[42:43]")
    A("L_end:")
    A("s_endpgm")
    L.extend(rare)
    body_ = "\n".join("    " + x if not x.endswith(":") else x for x in L)
    return wrap(body_, 256, 512, LDS, vgpr=NV, sgpr=64), LDS

if __name__ == "__main__" and len(sys.argv) > 1:
    vs = {"x_base": dict(NK=16), "x_plain": dict(NK=16, spol=""), "x_touch": dict(NK=16, touch=True), "x_pt": dict(NK=16, spol="", touch=True),
          "x_w9": dict(NK=16, spol="", touch=True, WK=9), "x_w10": dict(NK=16, spol="", touch=True, WK=10), "x_k14": dict(NK=14, spol="", touch=True, WK=10),
          "x_ph": dict(NK=12, DL=3, nomem=True, phase=True), "x_ph2": dict(NK=12, DL=3, phase=True, spol="", touch=True)}
    for name, kw in vs.items():
        asm, lds = gen(stamps=True, tl=True, **kw)
        build(asm, f"{name}.co")
    print(" ".join(f"work/{n}.co:$K,256,512,{lds}" for n in vs))
    print(",".join(f'"work/{n}.co"' for n in vs))
elif __name__ == "__main__":
    vs = {"v6k16": dict(NK=16), "v6k15": dict(NK=15, DL=1), "v6k14": dict(NK=14, DL=2), "v6k13": dict(NK=13, DL=3)}
    for name, kw in vs.items():
        asm, lds = gen(**kw)
        open(f"{name}.s", "w").write(asm)
        build(asm, f"{name}.co")
        asm, lds = gen(stamps=True, tl=True, **kw)
        build(asm, f"{name}_t.co")
        print(name, lds)
    asm, lds = gen(stamps=True, tl=True, nomem=True, NK=12, DL=3)
    build(asm, "v6nm_t.co")
```

```python
import sys, struct, math
from asmlib import *
import hazard
from gen4 import f32bits, cost, merge, fix_lgkm
from gen6 import weave

def gen(pol=" nt", stamps=False, tl=False, nomem=False, THR=8.0, stpol="", drop=(), W=15, G=2, phase=False, bdelay={}, order=0):
    L = []
    A = L.append
    NT = 32
    U = 16384
    VB = 4 * U
    VU = 8192
    QB = VB + 4 * VU
    XB = QB + U
    LDS = XB + 4096
    C = (128 ** -0.5) * math.log2(math.e)
    vQ, vK, vV, vS, vP, vO, vL, vC, vOne, vAK, vAV = 8, 40, 72, 88, 120, 136, 168, 176, 184, 188, 192
    vT0, vT1, vT2, vT3, vT4, vT5, vAW, vAR = 196, 197, 198, 199, 200, 201, 202, 203
    vE = 204
    NV = 212
    def r(b, n): return f"v[{b}:{b+n-1}]"
    sC = "s34"
    A("s_cmp_ge_u32 s2, 256")
    A("s_cbranch_scc1 L_end")
    A("s_load_dwordx4 s[4:7], s[0:1], 8")
    A("s_load_dwordx2 s[16:17], s[0:1], 0")
    A("s_load_dwordx2 s[18:19], s[0:1], 24")
    if stamps:
        A("s_load_dwordx4 s[40:43], s[0:1], 32")
        A("s_memrealtime s[44:45]")
        A("s_memtime s[50:51]")
    A("v_lshrrev_b32 v1, 6, v0")
    A("v_and_b32 v2, 63, v0")
    A("s_lshr_b32 s21, s2, 4")
    A("v_readfirstlane_b32 s3, v1")
    A("s_lshl_b32 s21, s21, 3")
    A("s_and_b32 s22, s2, 7")
    A("s_or_b32 s21, s21, s22")
    A("s_bfe_u32 s22, s2, 0x10003")
    A("v_and_b32 v3, 15, v2")
    A("v_lshrrev_b32 v4, 4, v2")
    A("v_xor_b32 v6, v3, v4")
    A("s_cmp_ge_u32 s3, 4")
    A("s_cbranch_scc1 L_compute")
    if tl: A("v_mov_b32 v20, 0")
    A("s_lshl_b32 s20, s21, 19")
    A("s_lshl_b32 s26, s3, 12")
    A("v_lshlrev_b32 v5, 8, v4")
    for j in range(4):
        A(f"v_xor_b32 v7, {4*j}, v6")
        A(f"v_lshl_add_u32 v{8+j}, v7, 4, v5")
    A("s_lshl_b32 s24, s21, 14")
    A("s_add_u32 s20, s20, s26")
    A("s_add_u32 s24, s24, s26")
    A("s_mov_b32 s11, 0x20000"); A("s_mov_b32 s15, 0x20000"); A("s_mov_b32 s39, 0x20000"); A("s_mov_b32 s38, 4096")
    A(f"s_sub_u32 s10, 0x80000, s26" if not nomem else "s_mov_b32 s10, 0")
    A("s_mov_b32 s14, 0")
    A(f"s_add_u32 m0, s26, {QB}")
    A("s_waitcnt lgkmcnt(0)")
    A("s_add_u32 s36, s16, s24"); A("s_addc_u32 s37, s17, 0")
    A("s_add_u32 s8, s4, s20"); A("s_addc_u32 s9, s5, 0")
    loads = []
    def unitK(j):
        fb = j - 4 if j >= 4 else -99
        for i in range(4):
            pre = [f"s_add_u32 m0, s26, {(j % 4) * U}", f"s_mov_b32 s30, {j * U}"] if i == 0 else []
            loads.append((pre, f"buffer_load_dwordx4 v{8+i}, s[8:11], s30 offen offset:{i*1024}{pol} lds", fb, f"K{j}"))
    def unitV(j):
        fb = j - 2 if j >= 3 else -99
        for i in range(2):
            pre = [f"s_add_u32 m0, s27, {(j % 4) * VU}", f"s_mov_b32 s31, {max(j,0) * U}"] if i == 0 else []
            if i == 0 and j == 0: pre.append("s_mov_b32 s14, s10")
            loads.append((pre, f"buffer_load_dwordx4 v{12+i}, s[12:15], s31 offen offset:{i*1024}{pol} lds", fb, f"V{j}"))
    for i in range(4):
        loads.append(([], f"buffer_load_dwordx4 v{8+i}, s[36:39], 0 offen offset:{i*1024} lds", -99, "Q"))
    vsetup = ["s_add_u32 s12, s6, s20", "s_addc_u32 s13, s7, 0",
              "v_lshrrev_b32 v4, 3, v2", "v_and_b32 v3, 7, v2", "v_and_b32 v5, 6, v4", "v_xor_b32 v3, v3, v5",
              "v_lshlrev_b32 v4, 8, v4", "v_lshl_add_u32 v12, v3, 4, v4", "s_lshl_b32 s23, s22, 7", "v_add_u32 v12, s23, v12", "v_add_u32 v13, 1024, v12",
              "s_lshl_b32 s27, s3, 11", f"s_add_u32 s27, s27, {VB}"]
    unitK(0)
    for s in range(0, NT + 1):
        if s + 1 < NT: unitK(s + 1)
        n0 = len(loads)
        unitV(s - 1)
        if s == 0:
            x = loads[n0]; loads[n0] = (vsetup + x[0],) + x[1:]
    last = {}
    for i, x in enumerate(loads): last[x[3]] = i
    bars = [(-2, last["Q"]), (-1, last["K0"])]
    for s in range(0, NT + 1):
        bars.append((s, max(last.get(f"K{s+1}", -1), last[f"V{s-1}"])))
    i = 0; bi = 0; done = -1; passed = -98; nb = 0
    n = len(loads)
    while bi < len(bars):
        b, cb = bars[bi]
        g = min(G, n - i)
        can_issue = g > 0 and all(loads[k][2] <= passed for k in range(i, i + g))
        ci = i + g - 1 - W
        if can_issue and (ci < cb + bdelay.get(b, 0) or cb >= i):
            if ci > done:
                A(f"s_waitcnt vmcnt({i - 1 - ci})"); done = ci
            for k in range(i, i + g):
                for z in loads[k][0]: A(z)
                A(loads[k][1])
            i += g
        else:
            assert cb < i
            if cb > done:
                A(f"s_waitcnt vmcnt({i - 1 - cb})"); done = cb
            A("s_barrier")
            if tl:
                A("s_memrealtime s[46:47]"); A("s_waitcnt lgkmcnt(0)"); A(f"v_writelane_b32 v20, s46, {nb}")
            nb += 1
            passed = b; bi += 1
    assert i == n
    if tl:
        A("s_cmp_lg_u32 s3, 0"); A("s_cbranch_scc1 L_end")
        A("s_lshl_b32 s16, s2, 8"); A("s_add_u32 s16, s16, 0x8040000")
        A("v_lshl_add_u32 v21, v2, 2, s16")
        A("global_store_dword v21, v20, s[42:43]")
    A("s_endpgm")
    A("L_compute:")
    A("s_sub_u32 s3, s3, 4")
    A("s_and_b32 s23, s3, 1")
    A("s_lshr_b32 s24, s3, 1")
    A("s_lshl_b32 s20, s21, 14")
    A("s_lshl_b32 s25, s23, 13")
    A("s_add_u32 s20, s20, s25")
    A("s_lshl_b32 s26, s22, 7")
    A("s_add_u32 s20, s20, s26")
    A("s_lshl_b32 s26, s24, 6")
    A("s_add_u32 s20, s20, s26")
    A("v_lshlrev_b32 v5, 8, v3")
    A(f"s_add_u32 s25, s25, {QB}")
    A("v_add_u32 v7, s25, v5")
    for m in range(4):
        A(f"v_xor_b32 v1, {4*m}, v6")
        A(f"v_lshl_add_u32 v{vAK+m}, v1, 4, v7")
    A("s_lshl_b32 s26, s24, 13")
    A("s_sub_u32 s27, s26, s25")
    A("v_and_b32 v1, 1, v4"); A("v_lshl_add_u32 v6, v1, 5, v5"); A("v_lshrrev_b32 v1, 1, v4"); A("v_lshl_add_u32 v6, v1, 4, v6")
    A("v_lshrrev_b32 v1, 2, v3")
    A("v_lshl_add_u32 v5, v4, 2, v1")
    A("v_bfe_u32 v7, v5, 1, 2")
    A("v_lshlrev_b32 v5, 7, v5")
    A("v_and_b32 v1, 3, v3")
    A("v_lshl_add_u32 v5, v1, 3, v5")
    A("s_lshl_b32 s25, s24, 12")
    A(f"s_add_u32 s25, s25, {VB}")
    A("v_add_u32 v5, s25, v5")
    A("s_lshl_b32 s26, s24, 1")
    A("v_xor_b32 v7, s26, v7")
    for dt in range(4):
        A(f"v_xor_b32 v1, {dt}, v7")
        A(f"v_lshl_add_u32 v{vAV+dt}, v1, 5, v5")
    A("s_lshl_b32 s25, s3, 12"); A(f"s_add_u32 s25, s25, {QB}")
    A(f"v_lshl_add_u32 v{vAW}, v2, 4, s25")
    A(f"v_xor_b32 v{vAR}, 8192, v{vAW}")
    A("s_lshl_b32 s25, s3, 10"); A(f"s_add_u32 s25, s25, {XB}")
    A("v_lshl_add_u32 v1, v2, 4, s25")
    A("v_xor_b32 v7, 2048, v1")
    A(f"s_mov_b32 s34, 0x{f32bits(C):08x}")
    A(f"s_mov_b32 s33, 0x{f32bits(THR):08x}")
    for i in range(32): A(f"v_mov_b32 v{vO+i}, 0")
    for i in range(8): A(f"v_mov_b32 v{vL+i}, 0")
    for i in range(8): A(f"v_mov_b32 v{vP+8+i}, 0")
    for i in range(4): A(f"v_mov_b32 v{vOne+i}, 0x3f803f80")
    A("s_mov_b32 s32, 0")
    if phase:
        A("s_mov_b32 s60, 0")
    A("s_waitcnt lgkmcnt(0)")
    A("s_add_u32 s12, s18, s20"); A("s_addc_u32 s13, s19, 0"); A(f"s_mov_b32 s14, {8192-192}"); A("s_mov_b32 s15, 0x20000")
    def kread(j, kt, m): return f"ds_read_b128 {r(vK+(kt*4+m)*4,4)}, v{vAK+m} offset:{(j%4)*U+kt*4096} ;@k{kt}{m}"
    def vread(j, dt, kt): return f"ds_read_b64_tr_b16 {r(vV+dt*4+2*kt,2)}, v{vAV+dt} offset:{(j%4)*VU+kt*2048} ;@v{dt}{kt}"
    def SB(j, kt=0, qt=0): return vS + 16*(j % 2) + (qt*2+kt)*4
    def PB(j, qt=0): return vP + 8*(j % 2) + 4*qt
    def qk(j, m, kt, qt, first=False):
        d = r(SB(j,kt,qt),4)
        c = ("0" if first else r(vC+4*qt,4)) if m == 0 else d
        return f"v_mfma_f32_16x16x32_bf16 {d}, {r(vK+(kt*4+m)*4,4)}, {r(vQ+(qt*4+m)*4,4)}, {c}"
    def pv(j, dt, qt):
        d = r(vO+(dt*2+qt)*4,4)
        return f"v_mfma_f32_16x16x32_bf16 {d}, {r(vV+dt*4,4)}, {r(PB(j,qt),4)}, {d}"
    def lm(j, qt):
        d = r(vL+4*qt,4)
        return f"v_mfma_f32_16x16x32_bf16 {d}, {r(vOne,4)}, {r(PB(j,qt),4)}, {d}"
    def mx(j):
        m = []
        for k in range(4):
            for qt in range(2):
                b = SB(j, 0, qt)
                if k == 0: m.append(f"v_max3_f32 v{vT0+qt}, v{b}, v{b+1}, v{b+2}")
                elif k < 3: m.append(f"v_max3_f32 v{vT0+qt}, v{vT0+qt}, v{b+2*k+1}, v{b+2*k+2}")
        m.append(f"v_max3_f32 v{vT2}, v{vT0}, v{SB(j,0,0)+7}, v{SB(j,0,1)+7}")
        m.append(f"v_max_f32 v{vT2}, v{vT2}, v{vT1}")
        return m
    def xmax(j):
        f = []
        for qt in range(2): f.append(f"v_max_f32 v{vT0+qt}, v{vT0+qt}, v{SB(j,0,qt)+7}")
        for sw in ("v_permlane32_swap_b32", "v_permlane16_swap_b32"):
            f += [f"v_mov_b32 v{vT2}, v{vT0}", f"v_mov_b32 v{vT3}, v{vT1}", "s_nop 1", f"{sw} v{vT0}, v{vT2}", f"{sw} v{vT1}, v{vT3}",
                  f"v_max_f32 v{vT0}, v{vT0}, v{vT2}", f"v_max_f32 v{vT1}, v{vT1}, v{vT3}"]
        return f
    A("s_barrier")
    for qt in range(2):
        for m in range(4): A(f"ds_read_b128 {r(vQ+(qt*4+m)*4,4)}, v{vAK+m} offset:{qt*4096}")
    for m in range(4): A(f"v_add_u32 v{vAK+m}, s27, v{vAK+m}")
    def presc(i):
        t = vS + 16 + 2*(i % 4)
        return [f"v_lshlrev_b32 v{t}, 16, v{vQ+i}", f"v_and_b32 v{t+1}, 0xffff0000, v{vQ+i}", f"v_mul_f32 v{t}, {sC}, v{t}", f"v_mul_f32 v{t+1}, {sC}, v{t+1}",
                f"v_cvt_pk_bf16_f32 v{vQ+i}, v{t}, v{t+1}"]
    for i in range(16):
        if i % 4 == 0: A(f"s_waitcnt lgkmcnt({7 - i//4})")
        for x in presc(i): A(x)
    A("s_waitcnt lgkmcnt(0)")
    A("s_barrier")
    for m in range(4):
        for kt in range(2): A(kread(0, kt, m).split(";@")[0])
    q0 = [qk(0, m, kt, 0, True) for m in range(4) for kt in range(2)]
    for i in range(16, 32):
        for x in presc(i): A(x)
        if i == 19: A("s_waitcnt lgkmcnt(0)")
        if i >= 20 and i < 28: A(q0[i - 20])
    A("s_nop 1")
    for m in range(4):
        for kt in range(2): A(qk(0, m, kt, 1, True))
    A("s_nop 7")
    for x in mx(0)[:6] + xmax(0): A(x)
    for qt in range(2):
        A(f"v_ceil_f32 v{vT0+qt}, v{vT0+qt}")
        for i in range(4): A(f"v_sub_f32 v{vC+4*qt+i}, 0, v{vT0+qt}")
        for i in range(8): A(f"v_sub_f32 v{SB(0,0,qt)+i}, v{SB(0,0,qt)+i}, v{vT0+qt}")
    if phase: A("s_memtime s[54:55]")
    rare = []
    def rareA(tag, j):
        f = [f"L_ra{tag}:", "s_nop 7"] + xmax(j)
        for qt in range(2):
            t = vT0 + qt
            f += [f"v_max_f32 v{t}, 0, v{t}", f"v_ceil_f32 v{t}, v{t}", f"v_sub_f32 v{vT2}, 0, v{t}", f"v_exp_f32 v{vT2}, v{vT2}"]
            f += [f"v_sub_f32 v{vC+4*qt+i}, v{vC+4*qt+i}, v{t}" for i in range(4)]
            f += [f"v_sub_f32 v{SB(j,0,qt)+i}, v{SB(j,0,qt)+i}, v{t}" for i in range(8)]
            f += [f"v_mul_f32 v{vO+(dt*2+qt)*4+i}, v{vT2}, v{vO+(dt*2+qt)*4+i}" for dt in range(4) for i in range(4)]
            f += [f"v_mul_f32 v{vL+4*qt}, v{vT2}, v{vL+4*qt}"]
            for i in range(4):
                p = PB(j-1, qt) + i
                f += [f"v_lshlrev_b32 v{vT4}, 16, v{p}", f"v_and_b32 v{vT5}, 0xffff0000, v{p}", f"v_mul_f32 v{vT4}, v{vT2}, v{vT4}", f"v_mul_f32 v{vT5}, v{vT2}, v{vT5}",
                      f"v_cvt_pk_bf16_f32 v{p}, v{vT4}, v{vT5}"]
        f += ["s_nop 1", f"s_branch L_rab{tag}"]
        return f
    def body(tag, j, hasqk=True):
        f = ["s_waitcnt lgkmcnt(0)", "s_barrier"]
        if phase:
            f = ["s_memtime s[56:57]", "s_waitcnt lgkmcnt(0)", "s_sub_u32 s58, s56, s54", "s_add_u32 s60, s60, s58", "s_barrier", "s_memtime s[54:55]", "s_waitcnt lgkmcnt(0)"]
        kr = [kread(j+1, kt, m) for m in range(4) for kt in range(2)] if hasqk else []
        vr = [vread(j-1, dt, kt) for dt in range(4) for kt in range(2)]
        rd = kr + vr
        f += rd[:4]
        f += merge(mx(j), rd[4:8])
        f += [f"v_cmp_lt_f32 vcc, s33, v{vT2}", f"s_cbranch_vccnz L_ra{tag}", f"L_rab{tag}:"]
        rare.extend(rareA(tag, j))
        sb = SB(j)
        e = []
        for i in range(16):
            e.append(f"v_exp_f32 v{sb+i}, v{sb+i}")
            if i % 2 == 0 and i >= 2: e.append(f"v_cvt_pk_bf16_f32 v{PB(j)+i//2-1}, v{sb+i-2}, v{sb+i-1}")
        e += ["s_nop 0", f"v_cvt_pk_bf16_f32 v{PB(j)+7}, v{sb+14}, v{sb+15}"]
        e = merge(e, rd[8:], 0.5)
        mf = [[lm(j-1, 0)], [lm(j-1, 1)]]
        if hasqk:
            mf += [[f"WAIT k{kt}{m}", qk(j+1, m, kt, qt)] for m in range(4) for kt in range(2) for qt in range(2)]
        mf += [[f"WAIT v{dt}1", pv(j-1, dt, qt)] for dt in range(4) for qt in range(2)]
        f += weave(e, mf, 1.0)
        f = fix_lgkm(f)
        if drop: f = [z for z in f if not z.startswith(tuple(drop))]
        return f
    pre = list(L)
    A("L_loop:")
    lp = []
    for j in range(4):
        lp += body(f"K{j}", j)
        if j == 2: lp += ["s_cmp_eq_u32 s32, 7", "s_cbranch_scc1 L_exit"]
    lp += ["s_add_u32 s32, s32, 1", "s_branch L_loop"]
    L.extend(lp)
    A("L_exit:")
    T = body("S31", 31, hasqk=False)
    T += ["s_nop 1", lm(31, 0), lm(31, 1), f"v_mov_b32 v{vE}, v{vC}", f"v_mov_b32 v{vE+1}, v{vC+4}", "s_nop 5",
          f"v_mov_b32 v{vE+2}, v{vL}", f"v_mov_b32 v{vE+3}, v{vL+4}", f"ds_write_b128 v1, {r(vE,4)}"]
    F = ["s_waitcnt lgkmcnt(0)", "s_barrier"]
    F += [vread(31, dt, kt) for dt in (2, 3) for kt in range(2)] + [f"ds_read_b128 {r(vE+4,4)}, v7 ;@e"] + [vread(31, dt, kt) for dt in (0, 1) for kt in range(2)]
    for dt in (2, 3):
        for qt in range(2): F += [f"WAIT v{dt}1", pv(31, dt, qt)]
    fin = ["WAIT e"]
    for qt in range(2):
        fin += [f"v_min_f32 v{vT4}, v{vE+qt}, v{vE+4+qt}", f"v_sub_f32 v{vT0+qt}, v{vT4}, v{vE+qt}", f"v_sub_f32 v{vT2+qt}, v{vT4}, v{vE+4+qt}",
                f"v_exp_f32 v{vT0+qt}, v{vT0+qt}", f"v_exp_f32 v{vT2+qt}, v{vT2+qt}"]
    for qt in range(2):
        fin += [f"v_mul_f32 v{vT4+qt}, v{vT0+qt}, v{vE+2+qt}", f"v_fmac_f32 v{vT4+qt}, v{vT2+qt}, v{vE+6+qt}", f"v_rcp_f32 v{vT4+qt}, v{vT4+qt}"]
    mo = [[f"WAIT v{dt}1", pv(31, dt, qt)] for dt in (0, 1) for qt in range(2)]
    F += mo[0] + fin[:4] + mo[1] + fin[4:8] + mo[2] + fin[8:11] + mo[3]
    F += [f"ds_write_b128 v{vAW}, {r(vO+16+4*g,4)} offset:{1024*g}" for g in range(4)]
    F += fin[11:]
    F += ["s_nop 0"]
    for qt in range(2): F += [f"v_mul_f32 v{vT0+qt}, v{vT4+qt}, v{vT0+qt}", f"v_mul_f32 v{vT2+qt}, v{vT4+qt}, v{vT2+qt}"]
    F += ["s_waitcnt lgkmcnt(0)", "s_barrier"]
    F += [f"ds_read_b128 {r(vK+4*g,4)}, v{vAR} offset:{1024*g} ;@x{g}" for g in range(4)]
    F += [f"v_mul_f32 v{vO+g*4+i}, v{vT0+(g%2)}, v{vO+g*4+i}" for g in range(4) for i in range(4)]
    for qt in range(2):
        d = vS + 4*qt
        for dt in range(2):
            g = dt*2 + qt
            F.append(f"WAIT x{g}")
            F += [f"v_fmac_f32 v{vO+g*4+i}, v{vT2+qt}, v{vK+g*4+i}" for i in range(4)]
            F += [f"v_cvt_pk_bf16_f32 v{d+2*dt+i}, v{vO+g*4+2*i}, v{vO+g*4+2*i+1}" for i in range(2)]
        F += ["s_nop 1", f"v_permlane16_swap_b32 v{d}, v{d+2}", f"v_permlane16_swap_b32 v{d+1}, v{d+3}"]
        F.append(f"buffer_store_dwordx4 {r(d,4)}, v6, s[12:15], {'0' if qt == 0 else 's28'} offen{stpol}")
    F = fix_lgkm(F)
    T = ["s_movk_i32 s28, 4096"] + T
    L.extend(T + F)
    k2 = lp.index("s_cbranch_scc1 L_exit")
    errs = hazard.check(pre[pre.index("L_compute:"):] + lp + lp[:k2+1] + T + F, "compute") + hazard.check(pre[:pre.index("L_compute:")], "loader") + hazard.check(rare, "rare")
    if not drop:
        for e in sorted(set(errs)): print("HAZARD", e)
    if stamps:
        A("s_waitcnt vmcnt(0)")
        A("s_memrealtime s[46:47]")
        A("s_memtime s[52:53]")
        A("s_cmp_lg_u32 s3, 2"); A("s_cbranch_scc1 L_end")
        A("s_waitcnt lgkmcnt(0)")
        A("v_mov_b32 v8, s44"); A("v_mov_b32 v9, s45"); A("v_mov_b32 v10, s46"); A("v_mov_b32 v11, s47")
        A("s_lshl_b32 s16, s2, 4"); A("s_add_u32 s16, s16, 0x8000000")
        A("v_mov_b32 v12, s16")
        A("s_mov_b64 exec, 1")
        A("global_store_dwordx4 v12, v[8:11], s[42:43]")
        A("v_mov_b32 v16, s50"); A("v_mov_b32 v17, s51"); A("v_mov_b32 v18, s52"); A("v_mov_b32 v19, s53")
        A("v_add_u32 v12, 0x10000, v12")
        A("global_store_dwordx4 v12, v[16:19], s[42:43]")
        if phase:
            A("v_mov_b32 v16, s60"); A("v_add_u32 v12, 0x10000, v12")
            A("global_store_dwordx4 v12, v[16:19], s[42:43]")
    A("L_end:")
    A("s_endpgm")
    L.extend(rare)
    body_ = "\n".join("    " + x if not x.endswith(":") else x for x in L)
    return wrap(body_, 256, 512, LDS, vgpr=NV, sgpr=64), LDS

if __name__ == "__main__":
    vs = {"v7a": dict(), "v7b": dict(bdelay={0: 6, -1: 2}), "v7w13": dict(W=13, bdelay={0: 6, -1: 2})}
    for name, kw in vs.items():
        asm, lds = gen(**kw)
        open(f"{name}.s", "w").write(asm)
        build(asm, f"{name}.co")
        asm, lds = gen(stamps=True, tl=True, **kw)
        build(asm, f"{name}_t.co")
        asm, lds = gen(stamps=True, **kw)
        build(asm, f"{name}_s.co")
        print(name, lds)
    asm, lds = gen(stamps=True, nomem=True, phase=True)
    build(asm, "v7nm_t.co")
```
